```python
import torch

def _softmax(x, axis=-1):
    return torch.softmax(x, dim=axis)

def _gelu(x):
    return torch.nn.functional.gelu(x, approximate='tanh')

def _silu(x):
    return torch.nn.functional.silu(x)

def _sigmoid(x):
    return torch.sigmoid(x)

def _layernorm(x, axis=-1, eps=1e-05):
    m = x.mean(dim=axis, keepdim=True)
    v = x.var(dim=axis, keepdim=True, unbiased=False)
    return (x - m) / torch.sqrt(v + eps)

def _scatter_add(tgt, idx, src, axis=0):
    return tgt.clone().index_add_(axis, idx, src)

def _segment_sum(src, seg, n):
    out = torch.zeros((n,) + src.shape[1:], dtype=src.dtype)
    return out.index_add_(0, seg, src)

def _pad(x, pw):
    flat = tuple((v for pair in reversed(pw) for v in pair))
    return torch.nn.functional.pad(x, flat)
kernel_name = 'parallel_sum__mha_block__mixer_gmlp__prompt'

def setup_inputs():

    _w = lambda a: (lambda t: t.to(torch.bfloat16) if t.is_floating_point() else t)(torch.as_tensor(a))

    def _A_setup():
        B, S, D, H = (1, 2048, 512, 32)
        return {'x': _w((lambda *s: torch.randn(*s, dtype=torch.bfloat16) * 0.05)(B, S, D)), 'wqkv': _w((lambda *s: torch.randn(*s, dtype=torch.bfloat16) * 0.2)(D, 3 * D)), 'wo': _w((lambda *s: torch.randn(*s, dtype=torch.bfloat16) * 0.2)(D, D))}
    _A_in = _A_setup()

    def _B_setup():
        B, S, D, F = (1, 2048, 512, 1792)
        Fh = F // 2
        return {'x': _w((lambda *s: torch.randn(*s, dtype=torch.bfloat16) * 0.05)(B, S, D)), 'w_in': _w((lambda *s: torch.randn(*s, dtype=torch.bfloat16) * 0.8)(D, 2 * Fh)), 'w_sp': _w(0.01 * (lambda *s: torch.randn(*s, dtype=torch.bfloat16) * 0.8)(S, S)), 'b_sp': _w(1.0 + 0.01 * (lambda *s: torch.randn(*s, dtype=torch.bfloat16) * 0.2)(S)), 'w_out': _w((lambda *s: torch.randn(*s, dtype=torch.bfloat16) * 0.2)(Fh, D))}
    _B_in = _B_setup()
    return {'A_x': _A_in['x'], 'A_wqkv': _A_in['wqkv'], 'A_wo': _A_in['wo'], 'B_x': _B_in['x'], 'B_w_in': _B_in['w_in'], 'B_w_sp': _B_in['w_sp'], 'B_b_sp': _B_in['b_sp'], 'B_w_out': _B_in['w_out']}

def reference(A_x, A_wqkv, A_wo, B_x, B_w_in, B_w_sp, B_b_sp, B_w_out):

    def _A_ref(x, wqkv, wo):
        B, S, D = x.shape
        H = 32
        Dh = D // H
        qkv = (lambda x, *d: x.permute(*d))((x @ wqkv).reshape(B, S, 3, H, Dh), 2, 0, 3, 1, 4)
        q, k, v = (qkv[0], qkv[1], qkv[2])
        scores = torch.einsum('bhqd,bhkd->bhqk', q, k) * Dh ** (-0.5)
        p = _softmax(scores, axis=-1)
        o = torch.einsum('bhqk,bhkd->bhqd', p, v)
        return (lambda x, *d: x.permute(*d))(o, 0, 2, 1, 3).reshape(B, S, D) @ wo

    def _B_ref(x, w_in, w_sp, b_sp, w_out):
        B, S, D = x.shape
        F = w_in.shape[-1]
        Fh = F // 2
        z = _gelu(torch.einsum('bsd,df->bsf', x, w_in))
        z1 = z[..., :Fh].clone()
        z2 = _layernorm(z[..., Fh:], axis=-1)
        g = torch.einsum('ts,bsf->btf', w_sp, z2) + b_sp[None, :, None]
        return torch.einsum('bsf,fd->bsd', z1 * g, w_out)
    x = A_x
    xn = _layernorm(x, axis=-1)
    return x + _A_ref(xn, A_wqkv, A_wo) + _B_ref(xn, B_w_in, B_w_sp, B_b_sp, B_w_out)
```

```python
import re

class Asm:
    def __init__(self):
        self.lines = []
        self._uid = 0
    def __call__(self, s):
        for l in s.split('\n'):
            l = l.strip()
            if l:
                self.lines.append(l)
    def label(self, name):
        self.lines.append(name + ':')
    def uid(self, p='L'):
        self._uid += 1
        return f'{p}_{self._uid}'
    def text(self):
        out = []
        for l in self.lines:
            if l.endswith(':') or l.startswith('.'):
                out.append(l)
            else:
                out.append('    ' + l)
        return '\n'.join(out) + '\n'

def vr(a, n=1):
    return f'v{a}' if n == 1 else f'v[{a}:{a+n-1}]'
def sr(a, n=1):
    return f's{a}' if n == 1 else f's[{a}:{a+n-1}]'

_REG = re.compile(r'\b([vsa])(\d+)\b|\b([vsa])\[(\d+):(\d+)\]|\b(vcc|exec|m0|scc)\b')
def regs_of(op):
    out = set()
    for m in _REG.finditer(op):
        if m.group(1): out.add((m.group(1), int(m.group(2))))
        elif m.group(3):
            for i in range(int(m.group(4)), int(m.group(5)) + 1): out.add((m.group(3), i))
        else: out.add((m.group(6), 0))
    return out

TRANS = ('v_exp_f32', 'v_log_f32', 'v_rcp_f32', 'v_rsq_f32', 'v_sqrt_f32', 'v_sin_f32', 'v_cos_f32', 'v_exp_f16', 'v_rcp_iflag_f32')

class Ins:
    def __init__(self, text):
        self.text = text
        t = text.split(';')[0].strip()
        parts = t.split(None, 1)
        self.op = parts[0]
        rest = parts[1] if len(parts) > 1 else ''
        ops = [o.strip() for o in re.split(r',(?![^\[]*\])', rest)] if rest else []
        self.ops = ops
        op = self.op
        self.is_mfma = op.startswith('v_mfma')
        self.is_valu = op.startswith('v_') and not self.is_mfma
        self.is_trans = any(op.startswith(x) for x in TRANS)
        self.is_ds = op.startswith('ds_')
        self.is_vmem = op.startswith('buffer_') or op.startswith('global_')
        self.is_salu = op.startswith('s_')
        self.is_dpp = 'quad_perm' in t or 'row_' in t
        self.is_perm = op.startswith('v_permlane')
        self.w = set(); self.r = set(); self.srcA = set(); self.srcB = set(); self.srcC = set()
        self.store_data = set()
        R = [regs_of(o) for o in ops]
        allr = set().union(*R) if R else set()
        if self.is_mfma:
            self.w = R[0]; self.srcA = R[1]; self.srcB = R[2]; self.srcC = R[3]; self.r = R[1] | R[2] | R[3]
            self.passes = 8 if '32x32x16' in op else 4
        elif self.is_valu:
            if op.startswith('v_cmp'):
                self.w = R[0]; self.r = set().union(*R[1:])
            elif op.startswith('v_permlane') and 'swap' in op:
                self.w = R[0] | R[1]; self.r = R[0] | R[1]
            elif op.startswith('v_readfirstlane') or op.startswith('v_readlane'):
                self.w = R[0]; self.r = set().union(*R[1:])
            else:
                self.w = R[0]; self.r = set().union(*R[1:]) if len(R) > 1 else set()
                if op.startswith(('v_fmac', 'v_dot2c', 'v_pk_fmac')) or 'UNUSED_PRESERVE' in t or self.is_dpp: self.r |= R[0]
                if op.startswith(('v_add_co', 'v_sub_co', 'v_addc_co')): self.w |= R[1]
                if op.startswith('v_cndmask') and len(ops) == 3: self.r.add(('vcc', 0))
        elif self.is_ds:
            if op.startswith(('ds_read', 'ds_bpermute', 'ds_swizzle')) or '_rtn' in op:
                self.w = R[0]; self.r = set().union(*R[1:])
            else:
                self.r = allr
        elif self.is_vmem:
            lds = (' lds' in t) or ('_lds_' in op)
            if 'store' in op:
                self.r = allr
                self.store_data = R[0] if op.startswith('buffer_') else R[1]
            elif 'atomic' in op:
                self.r = allr
                if 'sc0' in t: self.w = R[0]
            elif lds:
                self.r = allr | {('m0', 0)}
                self.lds_dma = True
            elif op in ('buffer_inv', 'buffer_wbl2'):
                pass
            else:
                self.w = R[0]; self.r = set().union(*R[1:])
        elif self.is_salu:
            if op.startswith(('s_cmp', 's_cbranch', 's_branch', 's_waitcnt', 's_barrier', 's_nop', 's_endpgm', 's_sleep', 's_setprio')):
                self.r = allr
            else:
                self.w = R[0] if R else set(); self.r = set().union(*R[1:]) if len(R) > 1 else set()
        self.states = 1
        if op == 's_nop': self.states = int(ops[0], 0) + 1

def check_seq(seq, where=''):
    bad = []
    n = len(seq)
    for i, c in enumerate(seq):
        dist = 0
        for j in range(i - 1, max(-1, i - 40), -1):
            p = seq[j]
            need = 0; why = ''
            vw = {x for x in p.w if x[0] in 'va'}
            sw = {x for x in p.w if x[0] == 's' or x[0] == 'vcc'}
            if p.is_mfma:
                big = {8: 12, 4: 8}[p.passes]
                if c.is_mfma:
                    if p.w & (c.srcA | c.srcB): need, why = big, 'mfma D->AB'
                    elif p.w & c.srcC and not (p.w == c.srcC and p.passes == c.passes): need, why = big - 2, 'mfma D->C overlap'
                    elif p.w & c.w and p.w != c.w: need, why = big - 2, 'mfma D->D overlap'
                elif (c.is_valu or c.is_ds or c.is_vmem) and p.w & (c.r | c.w): need, why = big, 'mfma D->valu/mem'
                if c.is_valu and (p.srcC - p.w) & c.w: need, why = max(need, {8: 7, 4: 3}[p.passes]), 'mfma srcC WAR'
            elif p.is_valu:
                if c.is_mfma and vw & c.r: need, why = 2, 'valu->mfma'
                if p.is_trans and c.is_valu and not c.is_trans and vw & c.r: need, why = max(need, 1), 'trans->valu'
                if p.is_trans and (c.is_mfma) and vw & c.r: need = max(need, 2)
                if (c.is_perm or c.is_dpp) and vw & c.r: need, why = max(need, 2), 'valu->permlane/dpp'
                if c.op.startswith(('v_readfirstlane', 'v_readlane')) and vw & c.r: need, why = max(need, 1), 'valu->readlane'
                if c.is_vmem and sw & c.r: need, why = max(need, 5), 'valu sgpr->vmem'
                if c.is_valu and sw & c.r: need, why = max(need, 2), 'valu sgpr->valu'
                if c.is_salu and sw & c.r and not c.op.startswith('s_cbranch'): need, why = max(need, 1), 'valu sgpr->salu(pad)'
            elif p.is_salu:
                if ('m0', 0) in p.w and getattr(c, 'lds_dma', False): need, why = 1, 'm0->ldsdma'
            if p.is_vmem and len(p.store_data) >= 3 and c.w & p.store_data and not c.is_vmem and not c.is_ds: need, why = max(need, 2), 'store data WAR'
            if dist < need:
                bad.append(f'{where}: need {need} have {dist} [{why}]: "{p.text}" -> "{c.text}"')
            dist += p.states
            if dist >= 20: break
    return bad

def check(lines, where=''):
    ins = []; labels = {}
    for l in lines:
        if l.endswith(':'): labels[l[:-1]] = len(ins)
        elif l.startswith('.') or l.startswith(';'): continue
        else: ins.append(Ins(l))
    bad = check_seq(ins, where)
    for i, c in enumerate(ins):
        if c.op.startswith(('s_cbranch', 's_branch')):
            t = labels.get(c.ops[0])
            if t is None: continue
            seq = ins[max(0, i - 24):i + 1] + ins[t:t + 24]
            k = len(ins[max(0, i - 24):i + 1])
            for b in check_seq(seq, where + f' via {c.text}'):
                if b not in bad: bad.append(b)
    return sorted(set(bad))
```

```python
from asmlib import *
import struct
MB = 1 << 20
WS_XN = 0
WS_QF = 2 * MB
WS_KV = 4 * MB
WS_Z1 = 8 * MB
WS_Z2R = 12 * MB
WS_Z2N = 16 * MB
WS_ACT = 20 * MB
WS_ST = 26 * MB
A_X, A_WQKV, A_WO, A_BX, A_WIN, A_WSP, A_BSP, A_WOUT, A_OUT, A_DBG, A_WS = [8 * i for i in range(11)]
def f32(x): return '0x%08x' % struct.unpack('<I', struct.pack('<f', x))[0]
LOG2E = 1.4426950408889634
QSCALE = 0.25 * LOG2E
GC0 = -2.0 * LOG2E * 0.7978845608028654
GC1 = GC0 * 0.044715

def kernel_head(a, name):
    a(f'.globl {name}')
    a('.p2align 8')
    a(f'.type {name},@function')
    a.label(name)

def kernel_desc(name, vgpr, sgpr=100):
    acc = (vgpr + 3) // 4 * 4
    return f'''.amdhsa_kernel {name}
  .amdhsa_next_free_vgpr {vgpr}
  .amdhsa_next_free_sgpr {sgpr}
  .amdhsa_accum_offset {acc}
  .amdhsa_group_segment_fixed_size 0
  .amdhsa_kernarg_size 88
  .amdhsa_user_sgpr_count 2
  .amdhsa_user_sgpr_kernarg_segment_ptr 1
  .amdhsa_system_sgpr_workgroup_id_x 1
  .amdhsa_float_denorm_mode_32 3
.end_amdhsa_kernel
'''

def add64(a, dst, src, off):
    a(f's_add_u32 s{dst}, s{src}, {off}')
    a(f's_addc_u32 s{dst+1}, s{src+1}, 0')

def round_bf16(a, v):
    a(f'v_cvt_pk_bf16_f32 v{v}, v{v}, v{v}')
    a(f'v_and_b32 v{v}, 0xffff0000, v{v}')

def csel(a, dst, t, f):
    a(f's_mov_b32 s{dst}, {f}')
    a(f's_cselect_b32 s{dst}, {t}, s{dst}')

import os
STAMPS = bool(int(os.environ.get('STAMPS', '0')))
WS_TS = 28 * MB
def stamp(a, idx, kern, v0=250, wave_s=None):
    if not STAMPS: return
    a('s_memtime s[92:93]')
    a('s_memrealtime s[96:97]')
    a(f's_lshl_b32 s94, s90, 7')
    a(f's_add_u32 s94, s94, {WS_TS + kern * 262144 + idx * 8}')
    a('s_waitcnt lgkmcnt(0)')
    a(f'v_mov_b32 v{v0}, s92')
    a(f'v_mov_b32 v{v0+1}, s93')
    a(f'v_mov_b32 v{v0+2}, s94')
    a(f'global_store_dwordx2 v{v0+2}, v[{v0}:{v0+1}], s[4:5]')
    a('s_nop 1')
    a(f'v_mov_b32 v{v0}, s96')
    a(f'v_mov_b32 v{v0+1}, s97')
    a(f'global_store_dwordx2 v{v0+2}, v[{v0}:{v0+1}], s[4:5] offset:64')
def stamp_init(a, wave_sgpr):
    if not STAMPS: return
    a('s_lshl_b32 s90, s2, 3')
    a(f's_add_u32 s90, s90, s{wave_sgpr}')
```

```python
from common import *
def gen_k0(mimic=True):
    a = Asm()
    name = 'ln_kernel'
    kernel_head(a, name)
    a('s_cmp_ge_u32 s2, 256')
    a('s_cbranch_scc1 K0_end')
    a(f's_load_dwordx2 s[4:5], s[0:1], {A_X}')
    a(f's_load_dwordx2 s[6:7], s[0:1], {A_WS}')
    a('v_lshrrev_b32 v1, 3, v0')
    a('v_and_b32 v2, 7, v0')
    a('s_lshl_b32 s3, s2, 13')
    a('v_lshlrev_b32 v3, 10, v1')
    a('v_lshl_add_u32 v3, v2, 4, v3')
    a('v_add_u32 v3, s3, v3')
    a('s_waitcnt lgkmcnt(0)')
    for j in range(8):
        a(f'global_load_dwordx4 v[{8+4*j}:{11+4*j}], v3, s[4:5] offset:{128*j}')
    a('s_lshr_b32 s8, s2, 2')
    a('s_lshl_b32 s8, s8, 15')
    a('s_and_b32 s9, s2, 3')
    a('s_lshl_b32 s9, s9, 7')
    a('s_add_u32 s8, s8, s9')
    a('v_lshrrev_b32 v4, 1, v2')
    a('v_lshlrev_b32 v4, 10, v4')
    a('v_and_b32 v5, 1, v2')
    a('v_lshl_add_u32 v4, v5, 9, v4')
    a('v_lshl_add_u32 v4, v1, 4, v4')
    a('v_add_u32 v4, s8, v4')
    a('s_waitcnt vmcnt(0)')
    X = 64
    for i in range(32):
        a(f'v_lshlrev_b32 v{X+2*i}, 16, v{8+i}')
        a(f'v_and_b32 v{X+2*i+1}, 0xffff0000, v{8+i}')
    def red8(v):
        for m in ('quad_perm:[1,0,3,2]', 'quad_perm:[2,3,0,1]', 'row_half_mirror'):
            a('s_nop 1')
            a(f'v_add_f32_dpp v{v}, v{v}, v{v} {m} row_mask:0xf bank_mask:0xf')
    a(f'v_add_f32 v6, v{X}, v{X+1}')
    for i in range(2, 64): a(f'v_add_f32 v6, v6, v{X+i}')
    red8(6)
    a(f'v_mul_f32 v6, {f32(1/512)}, v6')
    a('v_mov_b32 v7, 0')
    for i in range(64):
        a(f'v_sub_f32 v5, v{X+i}, v6')
        a(f'v_fmac_f32 v7, v5, v5')
    red8(7)
    a(f'v_mul_f32 v7, {f32(1/512)}, v7')
    if mimic:
        round_bf16(a, 6); round_bf16(a, 7)
        a(f'v_add_f32 v7, {f32(1e-5)}, v7')
        round_bf16(a, 7)
        a('v_sqrt_f32 v7, v7')
        a('s_nop 0')
        round_bf16(a, 7)
        a('v_rcp_f32 v7, v7')
        a('s_nop 0')
        for i in range(32):
            a(f'v_sub_f32 v{X+2*i}, v{X+2*i}, v6')
            a(f'v_sub_f32 v{X+2*i+1}, v{X+2*i+1}, v6')
            a(f'v_cvt_pk_bf16_f32 v5, v{X+2*i}, v{X+2*i+1}')
            a(f'v_lshlrev_b32 v{X+2*i}, 16, v5')
            a(f'v_and_b32 v{X+2*i+1}, 0xffff0000, v5')
            a(f'v_mul_f32 v{X+2*i}, v{X+2*i}, v7')
            a(f'v_mul_f32 v{X+2*i+1}, v{X+2*i+1}, v7')
            a(f'v_cvt_pk_bf16_f32 v{8+i}, v{X+2*i}, v{X+2*i+1}')
    else:
        a(f'v_add_f32 v7, {f32(1e-5)}, v7')
        a('v_rsq_f32 v7, v7')
        a('s_nop 0')
        for i in range(32):
            a(f'v_sub_f32 v{X+2*i}, v{X+2*i}, v6')
            a(f'v_sub_f32 v{X+2*i+1}, v{X+2*i+1}, v6')
            a(f'v_mul_f32 v{X+2*i}, v{X+2*i}, v7')
            a(f'v_mul_f32 v{X+2*i+1}, v{X+2*i+1}, v7')
            a(f'v_cvt_pk_bf16_f32 v{8+i}, v{X+2*i}, v{X+2*i+1}')
    for j in range(8):
        a(f'global_store_dwordx4 v4, v[{8+4*j}:{11+4*j}], s[6:7]')
        if j < 7: a('v_add_u32 v4, 0x1000, v4')
    a.label('K0_end')
    a('s_endpgm')
    return a, name, kernel_desc(name, 128), f'; @launch kernel={name} grid=(256,1,1) block=(64,1,1) lds=0'
```

```python
from common import *
XF = 128
ACC = 16
WF = 32
T = 48
def mfma_block(a, swap):
    def rd(ks):
        b = WF + 4 * (ks % 4)
        base = 4 if ks < 16 else 5
        off = 2048 * (ks % 16)
        a(f'ds_read_b64_tr_b16 v[{b}:{b+1}], v{base} offset:{off}')
        a(f'ds_read_b64_tr_b16 v[{b+2}:{b+3}], v{base} offset:{off+512}')
    for ks in range(3): rd(ks)
    for ks in range(32):
        if ks + 3 < 32: rd(ks + 3)
        n = 2 * min(3, 31 - ks)
        a(f's_waitcnt lgkmcnt({n})')
        w = vr(WF + 4 * (ks % 4), 4); x = vr(XF + 4 * ks, 4)
        A, B = (x, w) if swap else (w, x)
        c = '0' if ks == 0 else vr(ACC, 16)
        a(f'v_mfma_f32_32x32x16_bf16 {vr(ACC,16)}, {A}, {B}, {c}')

def issue_H(a, pair, kh):
    slot = (2 * pair + kh) % 5
    if pair < 3:
        a(f's_mul_i32 s26, s19, {pair}')
        a('s_add_u32 s26, s26, s18')
    else:
        a('s_mov_b32 s26, s20')
    a('s_add_u32 s26, s26, s22')
    if kh:
        a('s_lshl_b32 s27, s12, 8')
        a('s_add_u32 s26, s26, s27')
    a('s_lshl_b32 s27, s12, 3')
    for i in range(4):
        a(f's_add_u32 m0, s23, {slot*32768 + i*1024}')
        if i: a('s_add_u32 s26, s26, s27')
        else: a('s_nop 0')
        a('buffer_load_dwordx4 v2, s[8:11], s26 offen lds')

def gen_p1():
    a = Asm()
    name = 'p1_kernel'
    kernel_head(a, name)
    a('s_cmp_ge_u32 s2, 256')
    a('s_cbranch_scc1 P1_end')
    a(f's_load_dwordx2 s[4:5], s[0:1], {A_WS}')
    a(f's_load_dwordx2 s[6:7], s[0:1], {A_WQKV}')
    a(f's_load_dwordx2 s[28:29], s[0:1], {A_WIN}')
    a('v_lshrrev_b32 v1, 6, v0')
    a('v_and_b32 v0, 63, v0')
    a('v_readfirstlane_b32 s13, v1')
    a('s_and_b32 s30, s2, 1')
    a('s_lshl_b32 s30, s30, 3')
    a('s_bfe_u32 s31, s2, 0x30003')
    a('s_add_u32 s30, s30, s31')
    a('s_lshr_b32 s31, s2, 6')
    a('s_lshl_b32 s31, s31, 2')
    a('s_bfe_u32 s32, s2, 0x20001')
    a('s_add_u32 s31, s31, s32')
    a('s_lshr_b32 s14, s13, 2')
    a('s_and_b32 s15, s13, 3')
    a('s_lshl_b32 s30, s30, 2')
    a('s_add_u32 s15, s15, s30')
    a('s_lshr_b32 s16, s31, 3')
    a('s_and_b32 s33, s31, 7')
    a('s_waitcnt lgkmcnt(0)')
    a('s_cmp_eq_u32 s16, 0')
    a('s_cselect_b32 s8, s6, s28')
    a('s_cselect_b32 s9, s7, s29')
    csel(a, 10, 512*3072, 512*3584)
    a('s_mov_b32 s11, 0x20000')
    csel(a, 12, 3072, 3584)
    csel(a, 19, 1024, 128)
    a('s_mul_i32 s34, s33, 7')
    a('s_add_u32 s34, s34, 1')
    a('s_lshr_b32 s34, s34, 1')
    a('s_cmp_eq_u32 s16, 0')
    a('s_cselect_b32 s18, s33, s34')
    a('s_lshl_b32 s18, s18, 7')
    a('s_and_b32 s21, s33, 1')
    a('s_cmp_eq_u32 s21, 0')
    csel(a, 20, 384, -128)
    a('s_add_u32 s20, s20, s18')
    a('s_lshl_b32 s22, s13, 5')
    a('s_mul_i32 s22, s22, s12')
    a('s_lshl_b32 s23, s13, 12')
    a('v_lshrrev_b32 v10, 3, v0')
    a('v_mul_u32_u24 v2, s12, v10')
    a('v_and_b32 v11, 7, v0')
    a('v_and_b32 v10, 2, v10')
    a('v_lshlrev_b32 v10, 1, v10')
    a('v_xor_b32 v11, v11, v10')
    a('v_lshl_add_u32 v2, v11, 4, v2')
    a('v_lshlrev_b32 v1, 4, v0')
    issue_H(a, 0, 0); issue_H(a, 0, 1)
    a('s_lshl_b32 s26, s15, 15')
    add64(a, 24, 4, 's26')
    if WS_XN: add64(a, 24, 24, WS_XN)
    for ks in range(32):
        if ks % 4 == 0 and ks: add64(a, 24, 24, 4096)
        a(f'global_load_dwordx4 {vr(XF+4*ks,4)}, v1, s[24:25] offset:{1024*(ks%4)}')
    issue_H(a, 1, 0); issue_H(a, 1, 1); issue_H(a, 2, 0)
    a('v_lshrrev_b32 v10, 5, v0')
    a('v_lshlrev_b32 v3, 10, v10')
    a('v_bfe_u32 v10, v0, 2, 2')
    a('v_lshl_add_u32 v3, v10, 7, v3')
    a('v_lshrrev_b32 v10, 1, v10')
    a('v_lshl_add_u32 v3, v10, 6, v3')
    a('v_bfe_u32 v10, v0, 4, 1')
    a('v_lshl_add_u32 v3, v10, 5, v3')
    a('v_and_b32 v11, 3, v0')
    a('v_lshl_add_u32 v3, v11, 3, v3')
    a('v_lshlrev_b32 v6, 17, v10')
    a('v_lshrrev_b32 v10, 5, v0')
    a('v_lshl_add_u32 v6, v10, 9, v6')
    a('v_and_b32 v10, 15, v0')
    a('v_lshl_add_u32 v6, v10, 4, v6')
    a('v_mov_b32 v8, 0'); a('v_mov_b32 v9, 0')
    a(f'v_mov_b32 v10, {f32(GC1)}'); a(f'v_mov_b32 v11, {f32(GC1)}')
    a(f'v_mov_b32 v12, {f32(GC0)}'); a(f'v_mov_b32 v13, {f32(GC0)}')
    a('v_mov_b32 v14, 1.0'); a('v_mov_b32 v15, 1.0')
    a('v_mov_b32 v7, 0x3f803f80')
    a('s_mov_b32 s17, 0')
    a('s_mov_b32 s35, s14')
    a('s_mov_b32 s36, 0')
    a('s_mov_b32 s37, 32768')
    a('s_waitcnt vmcnt(12)')
    a('s_barrier')

    def sync(tag):
        a('s_waitcnt vmcnt(2)')
        a('s_barrier')
        a('s_cmp_eq_u32 s38, 1')
        a(f's_cbranch_scc0 P1_s2_{tag}')
        issue_H(a, 2, 1)
        a('s_cmp_eq_u32 s16, 0')
        a(f's_cbranch_scc1 P1_sd_{tag}')
        issue_H(a, 3, 0)
        a(f's_branch P1_sd_{tag}')
        a.label(f'P1_s2_{tag}')
        a('s_cmp_eq_u32 s38, 2')
        a(f's_cbranch_scc0 P1_sd_{tag}')
        a('s_cmp_eq_u32 s16, 0')
        a(f's_cbranch_scc1 P1_sd_{tag}')
        issue_H(a, 3, 1)
        a.label(f'P1_sd_{tag}')

    a.label('P1_loop')
    a('s_lshl_b32 s26, s35, 6')
    a('v_xor_b32 v4, s26, v3')
    a('v_add_u32 v5, s37, v4')
    a('v_add_u32 v4, s36, v4')
    a('s_lshl_b32 s26, s16, 2')
    a('s_add_u32 s39, s26, s17')
    a('s_cmp_eq_u32 s39, 2')
    a('s_cbranch_scc1 P1_mfmaV')
    mfma_block(a, False)
    a('s_branch P1_mdone')
    a.label('P1_mfmaV')
    mfma_block(a, True)
    a.label('P1_mdone')
    a('s_add_u32 s38, s17, 1')
    a('s_cmp_eq_u32 s14, 0')
    a('s_cbranch_scc1 P1_epi')
    a('s_cmp_eq_u32 s39, 2')
    a('s_cbranch_scc1 P1_epi')
    sync('B')
    a.label('P1_epi')
    a('s_nop 15')
    a('s_cmp_ge_u32 s39, 4')
    a('s_cbranch_scc1 P1_epiZ')
    a('s_lshl_b32 s26, s33, 2')
    a('s_lshl_b32 s27, s14, 1')
    a('s_add_u32 s26, s26, s27')
    a('s_lshl_b32 s26, s26, 6')
    a('s_add_u32 s26, s26, s15')
    a('s_cmp_eq_u32 s39, 0')
    a('s_cbranch_scc0 P1_epiKV')
    a(f's_mov_b32 s27, {f32(QSCALE)}')
    for i in range(16): a(f'v_mul_f32 v{ACC+i}, s27, v{ACC+i}')
    for i in range(8): a(f'v_cvt_pk_bf16_f32 v{T+i}, v{ACC+2*i}, v{ACC+2*i+1}')
    a('s_lshl_b32 s26, s26, 10')
    a(f's_add_u32 s26, s26, {WS_QF}')
    add64(a, 24, 4, 's26')
    a(f'global_store_dwordx4 v1, {vr(T,4)}, s[24:25]')
    add64(a, 24, 24, 65536)
    a(f'global_store_dwordx4 v1, {vr(T+4,4)}, s[24:25]')
    a('s_branch P1_next')
    a.label('P1_epiKV')
    for i in range(8): a(f'v_cvt_pk_bf16_f32 v{T+i}, v{ACC+2*i}, v{ACC+2*i+1}')
    a('s_lshl_b32 s26, s26, 11')
    a(f's_add_u32 s26, s26, {WS_KV}')
    add64(a, 24, 4, 's26')
    a('s_cmp_eq_u32 s39, 2')
    a('s_cbranch_scc1 P1_epiV')
    a(f'global_store_dwordx4 v1, {vr(T,4)}, s[24:25]')
    add64(a, 24, 24, 131072)
    a(f'global_store_dwordx4 v1, {vr(T+4,4)}, s[24:25]')
    a('s_branch P1_next')
    a.label('P1_epiV')
    a(f'global_store_dwordx4 v6, {vr(T,4)}, s[24:25] offset:1024')
    a(f'global_store_dwordx4 v6, {vr(T+4,4)}, s[24:25] offset:1280')
    a('s_branch P1_next')
    a.label('P1_epiZ')
    P = lambda i: vr(ACC + 2 * i, 2)
    Q = lambda i: vr(T + 2 * i, 2)
    for i in range(8): a(f'v_pk_mul_f32 {Q(i)}, {P(i)}, {P(i)}')
    for i in range(8): a(f'v_pk_fma_f32 {Q(i)}, {Q(i)}, v[10:11], v[12:13]')
    for i in range(8): a(f'v_pk_mul_f32 {Q(i)}, {Q(i)}, {P(i)}')
    for i in range(16): a(f'v_exp_f32 v{T+i}, v{T+i}')
    for i in range(8): a(f'v_pk_add_f32 {Q(i)}, {Q(i)}, v[14:15]')
    for i in range(16): a(f'v_rcp_f32 v{T+i}, v{T+i}')
    for i in range(8): a(f'v_pk_mul_f32 {Q(i)}, {Q(i)}, {P(i)}')
    for i in range(8): a(f'v_cvt_pk_bf16_f32 v{T+16+i}, v{T+2*i}, v{T+2*i+1}')
    a('s_add_u32 s26, s34, s17')
    a('s_lshr_b32 s27, s20, 7')
    a('s_cmp_lt_u32 s17, 3')
    a('s_cselect_b32 s26, s26, s27')
    a('s_lshl_b32 s26, s26, 1')
    a('s_add_u32 s26, s26, s35')
    a('s_mul_i32 s27, s15, 28')
    a('s_add_u32 s27, s27, s26')
    a('s_lshl_b32 s27, s27, 11')
    a('s_cmp_lt_u32 s26, 28')
    csel(a, 26, WS_Z1, WS_Z2R - 28*2048)
    a('s_add_u32 s26, s26, s27')
    add64(a, 24, 4, 's26')
    a(f'global_store_dwordx4 v1, {vr(T+16,4)}, s[24:25]')
    a(f'global_store_dwordx4 v1, {vr(T+20,4)}, s[24:25] offset:1024')
    for i in range(8):
        a(f'v_dot2c_f32_bf16 v8, v{T+16+i}, v7')
        a(f'v_dot2c_f32_bf16 v9, v{T+16+i}, v{T+16+i}')
    a.label('P1_next')
    a('s_add_u32 s17, s17, 1')
    for s in (36, 37):
        a(f's_add_u32 s{s}, s{s}, 65536')
        a(f's_sub_u32 s26, s{s}, 163840')
        a(f's_cmp_ge_u32 s{s}, 163840')
        a(f's_cselect_b32 s{s}, s26, s{s}')
    a('s_cmp_eq_u32 s14, 0')
    a('s_cbranch_scc1 P1_nextA')
    a('s_cmp_lt_u32 s17, 3')
    a('s_cbranch_scc1 P1_loop')
    a('s_branch P1_fin')
    a.label('P1_nextA')
    a('s_add_u32 s26, s16, 3')
    a('s_cmp_lt_u32 s17, s26')
    a('s_cbranch_scc0 P1_fin')
    a('s_mov_b32 s38, s17')
    a('s_cmp_eq_u32 s17, 3')
    a('s_cselect_b32 s35, s21, 0')
    sync('A')
    a('s_branch P1_loop')
    a.label('P1_fin')
    a('s_cmp_eq_u32 s16, 0')
    a('s_cbranch_scc1 P1_end')
    a('s_cmp_lt_u32 s33, 4')
    a('s_cbranch_scc1 P1_end')
    a('v_mov_b32 v16, v8')
    a('v_mov_b32 v17, v9')
    a('s_nop 2')
    a('v_permlane32_swap_b32 v8, v16')
    a('v_permlane32_swap_b32 v9, v17')
    a('s_sub_u32 s26, s33, 4')
    a('s_lshl_b32 s26, s26, 1')
    a('s_add_u32 s26, s26, s14')
    a('s_lshl_b32 s26, s26, 14')
    a('s_lshl_b32 s27, s15, 8')
    a('s_add_u32 s26, s26, s27')
    a(f's_add_u32 s26, s26, {WS_ST}')
    add64(a, 24, 4, 's26')
    a('v_add_f32 v8, v8, v16')
    a('v_add_f32 v9, v9, v17')
    a('v_lshlrev_b32 v1, 3, v0')
    a('s_mov_b32 exec_hi, 0')
    a('global_store_dwordx2 v1, v[8:9], s[24:25]')
    a.label('P1_end')
    a('s_endpgm')
    return a, name, kernel_desc(name, 256), f'; @launch kernel={name} grid=(256,1,1) block=(512,1,1) lds=163840'
```

```python
from common import *
BOFF = float(os.environ.get('BOFF', 80))
LDS_MRG = 98304
LDS_FLG = LDS_MRG + 4 * 9216
LDS_P2 = LDS_FLG + 64
QR, KR, VR_, PR, SR_, CR, OR_ = 8, 24, 40, 72, 88, 120, 184
SC1 = ''
MF = 'v_mfma_f32_32x32x16_bf16'
def Kb(b): return vr(KR + 4 * (b % 4), 4)
def Vb(b, g): return vr(VR_ + 8 * (b % 4) + 4 * g, 4)
def Sx(X): return SR_ + 16 * (X & 1)
def Px(X): return PR + 8 * (X & 1)
def Cx(X): return CR + 16 * X
def Ox(X): return OR_ + 16 * X
def Qx(X): return vr(QR + 4 * X, 4)

def lds_wait(a, addr_v, target, tag, tmpv, tmps):
    a.label(tag)
    a(f'ds_read_b32 v{tmpv}, v{addr_v}')
    a('s_waitcnt lgkmcnt(0)')
    a(f'v_readfirstlane_b32 s{tmps}, v{tmpv}')
    a('s_nop 0')
    a(f's_cmp_ge_u32 s{tmps}, {target}')
    a(f's_cbranch_scc1 {tag}_d')
    a('s_sleep 1')
    a(f's_branch {tag}')
    a.label(tag + '_d')

EXP = os.environ.get('EXPV', '')
def att_slot(a0, X, t):
    def a(l):
        if 'nopv' in EXP and l.startswith(MF) and l.split(',')[0].endswith(tuple(vr(Ox(i),16) for i in range(4))): return
        if 'noexp' in EXP and l.startswith('v_exp'): l = l.replace('v_exp_f32', 'v_mov_b32')
        if 'noqk' in EXP and l.startswith(MF) and not l.split(',')[0].endswith(tuple(vr(Ox(i),16) for i in range(4))): return
        a0(l)
    S = Sx(X); P = Px(X)
    e = lambda i: a(f'v_exp_f32 v{S+i}, v{S+i}')
    c = lambda i: a(f'v_cvt_pk_bf16_f32 v{P+i}, v{S+2*i}, v{S+2*i+1}')
    Xp = (X - 1) % 4; tp = t - 1 if X == 0 else t
    Xn = (X + 1) % 4; tn = t + 1 if X == 3 else t
    e(0); e(1)
    a(f'{MF} {vr(Ox(Xp),16)}, {Vb(tp,1)}, {vr(Px(Xp)+4,4)}, {vr(Ox(Xp),16)}')
    if X == 0:
        off = (t + 3) * 2048 + 1024 - 11264
        a('s_mov_b64 exec, s[40:41]')
        a(f'global_load_dwordx4 {Vb(t+3,0)}, v1, s[24:25] offset:{off}')
        a(f'global_load_dwordx4 {Vb(t+3,1)}, v1, s[24:25] offset:{off+256}')
        a('s_mov_b64 exec, -1')
    e(2); e(3); e(4); e(5)
    if X == 3: a('s_waitcnt vmcnt(6)')
    a(f'{MF} {vr(Sx(Xn),16)}, {Kb(tn)}, {Qx(Xn)}, {vr(Cx(Xn),16)}')
    if X == 3:
        a(f'global_load_dwordx4 {Kb(t+4)}, v1, s[24:25] offset:{(t+4)*2048 - 11264}')
    e(6); e(7); c(0); c(1); c(2); c(3); e(8); e(9)
    a(f'{MF} {vr(Ox(X),16)}, {Vb(t,0)}, {vr(P,4)}, {vr(Ox(X),16)}')
    for i in range(10, 16): e(i)
    for i in range(4, 8): c(i)

def rare(a, sets, tag):
    a.label(tag)
    if STAMPS: a('s_add_u32 s45, s45, 1')
    for X in sets:
        l = Ox(X) + 8
        a(f'v_cmp_nle_f32 vcc, v{l}, v6')
        a(f'v_frexp_exp_i32_f32 v2, v{l}')
        a('s_or_b64 s[42:43], s[42:43], vcc')
        a(f'v_add_u32 v2, {int(BOFF)}, v2')
        a('v_max_i32 v2, 0, v2')
        a('v_cvt_f32_i32 v3, v2')
        a('v_sub_u32 v2, 0, v2')
        for i in range(9): a(f'v_ldexp_f32 v{Ox(X)+i}, v{Ox(X)+i}, v2')
        for i in range(16): a(f'v_sub_f32 v{Cx(X)+i}, v{Cx(X)+i}, v3')
    a('s_nop 0')
    a(f's_branch {tag}_ret')

def check(a, sets, tag):
    a(f'v_max_f32 v2, v{Ox(sets[0])+8}, v{Ox(sets[1])+8}')
    a('v_cmp_lt_f32 vcc, 1.0, v2')
    a(f's_cbranch_vccnz {tag}')
    a.label(tag + '_ret')

def maxtile(a, S, m, first):
    if first:
        a(f'v_max3_f32 v{m}, v{S}, v{S+1}, v{S+2}')
        a(f'v_max_f32 v{m}, v{m}, v{S+15}')
        rng = range(3, 15, 2)
    else:
        rng = range(0, 16, 2)
    for i in rng: a(f'v_max3_f32 v{m}, v{m}, v{S+i}, v{S+i+1}')

def gen_att(a):
    a('s_lshl_b32 s14, s30, 2')
    a('s_lshr_b32 s26, s31, 3')
    a('s_add_u32 s14, s14, s26')
    a('s_and_b32 s15, s31, 7')
    a('s_lshl_b32 s15, s15, 3')
    a('s_lshr_b32 s26, s13, 1')
    a('s_lshl_b32 s26, s26, 2')
    a('s_add_u32 s15, s15, s26')
    a('s_and_b32 s16, s13, 1')
    a('s_lshl_b32 s26, s14, 6')
    a('s_add_u32 s27, s26, s15')
    a('s_lshl_b32 s27, s27, 10')
    a(f's_add_u32 s27, s27, {WS_QF}')
    add64(a, 24, 4, 's27')
    for X in range(4): a(f'global_load_dwordx4 {Qx(X)}, v1, s[24:25] offset:{1024*X}')
    a('s_lshl_b32 s27, s16, 5')
    a('s_add_u32 s26, s26, s27')
    a('s_lshl_b32 s26, s26, 11')
    a(f's_add_u32 s26, s26, {WS_KV + 4096}')
    add64(a, 20, 4, 's26')
    a('s_mov_b32 s40, 0xffff'); a('s_mov_b32 s41, 0xffff')
    a('s_mov_b32 s46, 0x3f803f80'); a('s_mov_b32 s47, 0x3f803f80')
    a('s_mov_b32 s44, 0')
    a('s_mov_b32 s45, 0')
    a.label('A_restart')
    if os.environ.get('ALLONES'):
        for i in range(16): a(f'v_mov_b64 {vr(VR_+2*i,2)}, s[46:47]')
    else:
        for i in range(16): a(f'v_mov_b64 {vr(VR_+2*i,2)}, 0')
        a('s_mov_b32 exec_lo, 0x110000'); a('s_mov_b32 exec_hi, 0x110000')
        for i in range(16): a(f'v_mov_b64 {vr(VR_+2*i,2)}, s[46:47]')
        a('s_mov_b64 exec, -1')
    for t in range(4):
        a(f'global_load_dwordx4 {Kb(t)}, v1, s[20:21] offset:{t*2048-4096}')
        if t < 3:
            a('s_mov_b64 exec, s[40:41]')
            a(f'global_load_dwordx4 {Vb(t,0)}, v1, s[20:21] offset:{t*2048+1024-4096}')
            a(f'global_load_dwordx4 {Vb(t,1)}, v1, s[20:21] offset:{t*2048+1280-4096}')
            a('s_mov_b64 exec, -1')
    add64(a, 24, 20, 11264 - 4096)
    a('s_mov_b64 s[42:43], 0')
    for X in range(4):
        for i in range(5): a(f'v_mov_b64 {vr(Ox(X)+2*i,2)}, 0')
    for i in range(2): a(f'v_mov_b64 {vr(Px(3)+4+2*i,2)}, 0')
    a(f'v_mov_b32 v6, {f32(2.0**120)}')
    a('s_cmp_lg_u32 s44, 0')
    a('s_cbranch_scc1 A_setC')
    a('s_barrier')
    a('s_waitcnt vmcnt(6)')
    for X in range(4):
        for t in range(2):
            a(f'{MF} {vr(CR+16*((2*X+t)%4),16)}, {Kb(t)}, {Qx(X)}, 0')
        if X >= 1:
            pass
        if X % 2 == 1:
            a('s_nop 11')
            for XX in (X - 1, X):
                maxtile(a, CR + 16 * ((2 * XX) % 4), 248 + XX, True)
                maxtile(a, CR + 16 * ((2 * XX + 1) % 4), 248 + XX, False)
    a.label('A_setC')
    for X in range(4): a(f'v_mov_b32 v{252+X}, v{248+X}')
    a('s_nop 0')
    for X in range(4): a(f'v_permlane32_swap_b32 v{248+X}, v{252+X}')
    for X in range(4): a(f'v_max_f32 v{248+X}, v{248+X}, v{252+X}')
    for X in range(4):
        a(f'v_sub_f32 v{Cx(X)}, {f32(-BOFF)}, v{248+X}')
        a(f'v_mov_b32 v{Cx(X)+1}, v{Cx(X)}')
        for i in range(1, 8): a(f'v_mov_b64 {vr(Cx(X)+2*i,2)}, {vr(Cx(X),2)}')
    a('s_waitcnt vmcnt(6)')
    a('s_mov_b32 s17, 8')
    a(f'{MF} {vr(Sx(0),16)}, {Kb(0)}, {Qx(0)}, {vr(Cx(0),16)}')
    a('s_nop 11')
    if STAMPS:
        stamp(a, 1, 2, 2); a('s_waitcnt vmcnt(0)')
    a('.p2align 6')
    a.label('A_loop')
    for t in range(4):
        for X in range(4):
            att_slot(a, X, t)
            if t == 1 and X == 1: check(a, (3, 0), 'A_rareB')
    check(a, (1, 2), 'A_rareA')
    add64(a, 24, 24, 8192)
    a('s_sub_u32 s17, s17, 1')
    a('s_cmp_lg_u32 s17, 0')
    a('s_cbranch_scc1 A_loop')
    a(f'{MF} {vr(Ox(3),16)}, {Vb(3,1)}, {vr(Px(3)+4,4)}, {vr(Ox(3),16)}')
    stamp(a, 2, 2, 2)
    a('v_mov_b32 v2, 0')
    for X in range(4):
        if X == 3: a('s_nop 3')
        a(f'v_cmp_nle_f32 vcc, v{Ox(X)+8}, v6')
        for i in range(8): a(f'v_fmac_f32 v2, 0, v{Ox(X)+i}')
        a('s_or_b64 s[42:43], s[42:43], vcc')
    a('v_cmp_u_f32 vcc, v2, v2')
    a('s_nop 0')
    a('s_or_b64 s[42:43], s[42:43], vcc')
    a('s_cbranch_scc0 A_epi')
    a('s_cmp_eq_u32 s44, 0')
    a('s_cbranch_scc1 A_fallback')
    a.label('A_epi')
    a(f's_mul_i32 s26, s13, 9216')
    a(f's_add_u32 s26, s26, {LDS_MRG}')
    a('v_add_u32 v4, s26, v1')
    a('v_lshlrev_b32 v5, 2, v0')
    a('v_add_u32 v5, s26, v5')
    for X in range(4):
        a(f'v_rcp_f32 v{248+X}, v{Ox(X)+8}')
        a(f'v_log_f32 v{252+X}, v{Ox(X)+8}')
    for X in range(4):
        for i in range(8): a(f'v_mul_f32 v{Ox(X)+i}, v{Ox(X)+i}, v{248+X}')
        a(f'v_sub_f32 v{252+X}, v{252+X}, v{Cx(X)}')
        a(f'ds_write_b128 v4, {vr(Ox(X),4)} offset:{X*2304}')
        a(f'ds_write_b128 v4, {vr(Ox(X)+4,4)} offset:{X*2304+1024}')
        a(f'ds_write_b32 v5, v{252+X} offset:{X*2304+2048}')
    a('s_lshr_b32 s27, s13, 1')
    a('s_lshl_b32 s27, s27, 2')
    a(f's_add_u32 s27, s27, {LDS_FLG+8}')
    a('v_mov_b32 v7, s27')
    a('v_mov_b32 v3, 1')
    a('s_waitcnt lgkmcnt(0)')
    a('s_mov_b64 exec, 1')
    a('ds_add_u32 v7, v3')
    a('s_mov_b64 exec, -1')
    a('s_and_b32 s27, s13, 2')
    a('s_mul_i32 s27, s27, 9216')
    a('s_mul_i32 s26, s16, 4608')
    a('s_add_u32 s27, s27, s26')
    a(f's_add_u32 s27, s27, {LDS_MRG}')
    a('v_add_u32 v4, s27, v1')
    a('v_lshlrev_b32 v5, 2, v0')
    a('v_add_u32 v5, s27, v5')
    lds_wait(a, 7, 2, 'A_w', 3, 26)
    R = 120
    for k in range(2):
        for side in range(2):
            b = R + 20 * (2 * k + side); o = k * 2304 + side * 9216
            a(f'ds_read_b128 {vr(b,4)}, v4 offset:{o}')
            a(f'ds_read_b128 {vr(b+4,4)}, v4 offset:{o+1024}')
            a(f'ds_read_b32 v{b+8}, v5 offset:{o+2048}')
    a('s_lshl_b32 s26, s16, 1')
    a('s_add_u32 s26, s26, s15')
    a('s_mul_i32 s26, s26, 88')
    a('s_add_u32 s26, s26, s14')
    a('s_lshl_b32 s26, s26, 10')
    a(f's_add_u32 s26, s26, {WS_ACT}')
    add64(a, 24, 4, 's26')
    a('s_waitcnt lgkmcnt(0)')
    for k in range(2):
        A = R + 40 * k; B = A + 20
        a(f'v_sub_f32 v{A+9}, v{B+8}, v{A+8}')
        a(f'v_exp_f32 v{A+9}, v{A+9}')
        for i in range(8): a(f'v_sub_f32 v{A+i}, v{A+i}, v{B+i}')
        a(f'v_add_f32 v{A+9}, 1.0, v{A+9}')
        a(f'v_rcp_f32 v{A+9}, v{A+9}')
        a('s_nop 0')
        for i in range(8): a(f'v_fmac_f32 v{B+i}, v{A+9}, v{A+i}')
        for i in range(4): a(f'v_cvt_pk_bf16_f32 v{A+12+i}, v{B+2*i}, v{B+2*i+1}')
        a(f'global_store_dwordx4 v1, {vr(A+12,4)}, s[24:25]')
        if k == 0: add64(a, 24, 24, 88 * 1024)
    stamp(a, 3, 2, 2)
    if STAMPS:
        a('v_mov_b32 v2, s44'); a('v_mov_b32 v3, s45'); a('s_add_u32 s94, s94, 8'); a('v_mov_b32 v4, s94'); a('global_store_dwordx2 v4, v[2:3], s[4:5]')
    a('s_endpgm')
    rare(a, (1, 2), 'A_rareA')
    rare(a, (3, 0), 'A_rareB')
    a.label('A_fallback')
    a('s_mov_b32 s44, 1')
    a('s_waitcnt vmcnt(0)')
    for X in range(4): a(f'v_mov_b32 v{248+X}, 0xff800000')
    a('s_mov_b64 s[24:25], s[20:21]')
    a('s_mov_b32 s17, 32')
    a.label('A_fbl')
    a(f'global_load_dwordx4 {Kb(0)}, v1, s[24:25] offset:-4096')
    add64(a, 24, 24, 2048)
    a('s_waitcnt vmcnt(0)')
    for X in range(4): a(f'{MF} {vr(Cx(X),16)}, {Kb(0)}, {Qx(X)}, 0')
    a('s_nop 11')
    for X in range(4): maxtile(a, Cx(X), 248 + X, False)
    a('s_sub_u32 s17, s17, 1')
    a('s_cmp_lg_u32 s17, 0')
    a('s_cbranch_scc1 A_fbl')
    a('s_branch A_restart')

def gen_gemm(a):
    ACC, WR, ZR = 128, 32, 64
    a(f's_cmp_ge_u32 s31, {int(os.environ.get("NOGEMM", 28))}')
    a('s_cbranch_scc0 G_go')
    a('s_barrier')
    a('s_endpgm')
    a.label('G_go')
    a('s_barrier')
    a(f's_load_dwordx2 s[6:7], s[0:1], {A_WSP}')
    a(f's_load_dwordx2 s[28:29], s[0:1], {A_BSP}')
    a(f's_load_dwordx2 s[32:33], s[0:1], {A_DBG}')
    a('s_sub_u32 s13, s13, 4')
    a('s_mul_i32 s26, s31, 37')
    a('s_lshr_b32 s26, s26, 8')
    a('s_mul_i32 s27, s26, 7')
    a('s_sub_u32 s15, s31, s27')
    a('s_lshl_b32 s14, s30, 2')
    a('s_add_u32 s14, s14, s26')
    a('s_mul_i32 s23, s13, 24576')
    a('s_lshl_b32 s16, s15, 2')
    a('s_add_u32 s16, s16, s13')
    a('s_mul_i32 s26, s14, 56')
    a('s_add_u32 s26, s26, s16')
    a('s_lshl_b32 s18, s26, 11')
    a('v_and_b32 v5, 31, v0')
    a('v_lshrrev_b32 v7, 3, v0')
    a('v_lshlrev_b32 v2, 12, v7')
    a('v_lshrrev_b32 v7, 1, v7')
    a('v_and_b32 v8, 7, v0')
    a('v_xor_b32 v7, v7, v8')
    a('v_lshl_add_u32 v2, v7, 4, v2')
    a('v_xor_b32 v4, 64, v2')
    a('s_waitcnt lgkmcnt(0)')
    a('s_mov_b32 s8, s6'); a('s_mov_b32 s9, s7'); a(f's_mov_b32 s10, {2048*4096}'); a('s_mov_b32 s11, 0x20000')
    a('s_lshl_b32 s19, s14, 18')
    a('s_lshl_b32 s26, s13, 10')
    a('s_add_u32 s19, s19, s26')
    a('s_mov_b32 s22, s23')
    def dma():
        for i in range(8):
            a(f's_add_u32 m0, s22, {1024*i}')
            a(f's_add_u32 s26, s19, {i*8*4096}')
            a(f'buffer_load_dwordx4 v{4 if i&1 else 2}, s[8:11], s26 offen lds')
        a('s_add_u32 s19, s19, 128')
        a('s_xor_b32 s22, s22, s21')
    a('s_add_u32 s21, s23, 8192')
    a('s_xor_b32 s21, s21, s23')
    dma(); dma()
    a.label('G_ready')
    stamp(a, 2, 2, 20)
    if STAMPS: a('s_waitcnt vmcnt(0)')
    a('s_mov_b64 exec, -1')
    for sl in range(4):
        a(f's_add_u32 s26, s13, {sl}')
        a('s_and_b32 s26, s26, 3')
        a('s_lshl_b32 s27, s15, 2')
        a('s_add_u32 s26, s26, s27')
        a('s_lshl_b32 s26, s26, 2')
        a('s_add_u32 s26, s26, s13')
        a('s_lshl_b32 s26, s26, 15')
        a(f's_add_u32 s26, s26, {WS_Z2N}')
        add64(a, 48 + 2 * sl, 4, 's26')
    for ks in range(4):
        for sl in range(4):
            a(f'global_load_dwordx4 {vr(ZR+4*(4*ks+sl),4)}, v1, s[{48+2*sl}:{49+2*sl}] offset:{1024*ks}{SC1}')
    for sl in range(4): add64(a, 48 + 2 * sl, 48 + 2 * sl, 4096)
    a('v_lshlrev_b32 v12, 7, v5')
    a('v_bfe_u32 v7, v0, 1, 3')
    a('v_lshrrev_b32 v8, 5, v0')
    a('v_xor_b32 v7, v7, v8')
    a('v_lshl_add_u32 v12, v7, 4, v12')
    a('v_add_u32 v12, s23, v12')
    for ks in range(1, 4): a(f'v_xor_b32 v{12+ks}, {32*ks}, v12')
    for i in range(64): a(f'v_mov_b64 {vr(ACC+2*i,2)}, 0')
    a('s_mov_b32 s17, 8')
    a('s_waitcnt vmcnt(24)')
    a.label('G_loop')
    for th in range(2):
        for ks in range(4):
            a(f'ds_read_b128 {vr(WR+4*(4*th+ks),4)}, v{12+ks} offset:{4096*th}')
    for ks in range(4): a(f'v_xor_b32 v{12+ks}, s21, v{12+ks}')
    a('s_waitcnt lgkmcnt(0)')
    dma()
    for ks in range(4):
        for sl in range(4):
            z = vr(ZR + 4 * (4 * ks + sl), 4)
            a('s_waitcnt vmcnt(23)')
            for th in range(2):
                d = vr(ACC + 16 * (2 * sl + th), 16)
                a(f'{MF} {d}, {z}, {vr(WR+4*(4*th+ks),4)}, {d}')
            a(f'global_load_dwordx4 {z}, v1, s[{48+2*sl}:{49+2*sl}] offset:{1024*ks}{SC1}')
    for sl in range(4): add64(a, 48 + 2 * sl, 48 + 2 * sl, 4096)
    a('s_sub_u32 s17, s17, 1')
    a('s_cmp_lg_u32 s17, 0')
    a('s_cbranch_scc1 G_loop')
    a('s_waitcnt vmcnt(0)')
    stamp(a, 3, 2, 20)
    a(f's_add_u32 s26, s18, {WS_Z1}')
    add64(a, 24, 4, 's26')
    for th in range(2):
        a(f'global_load_dwordx4 {vr(64+8*th,4)}, v1, s[24:25]')
        a(f'global_load_dwordx4 {vr(68+8*th,4)}, v1, s[24:25] offset:1024')
        if th == 0: add64(a, 24, 24, 28 * 2048)
    a('v_lshlrev_b32 v6, 1, v5')
    a('s_lshl_b32 s26, s14, 7')
    add64(a, 28, 28, 's26')
    a('global_load_ushort v16, v6, s[28:29]')
    a('global_load_ushort v17, v6, s[28:29] offset:64')
    a('v_add_u32 v9, s23, v1')
    for sl in range(1, 4):
        for q in range(8):
            a(f'ds_write_b128 v9, {vr(ACC+32*sl+4*q,4)} offset:{(sl-1)*8192+1024*q}')
    a(f'v_mov_b32 v7, {LDS_FLG+4}')
    a('v_mov_b32 v8, 1')
    a('s_waitcnt lgkmcnt(0)')
    a('s_mov_b64 exec, 1')
    a('ds_add_u32 v7, v8')
    a('s_mov_b64 exec, -1')
    for sl in range(1, 4):
        a(f's_sub_u32 s26, s13, {sl}')
        a('s_and_b32 s26, s26, 3')
        a('s_mul_i32 s26, s26, 24576')
        a(f'v_add_u32 v{8+sl}, s26, v1')
    lds_wait(a, 7, 4, 'G_w', 8, 26)
    for sl in range(1, 4):
        for q in range(8):
            a(f'ds_read_b128 {vr(ACC+32*sl+4*q,4)}, v{8+sl} offset:{(sl-1)*8192+1024*q}')
        if sl > 1:
            a('s_waitcnt lgkmcnt(8)')
            for i in range(32): a(f'v_add_f32 v{ACC+i}, v{ACC+i}, v{ACC+32*(sl-1)+i}')
    a('s_mul_i32 s26, s14, 176')
    a('s_lshl_b32 s27, s16, 1')
    a('s_add_u32 s26, s26, s27')
    a('s_add_u32 s26, s26, 32')
    a('s_lshl_b32 s26, s26, 10')
    a(f's_add_u32 s26, s26, {WS_ACT}')
    add64(a, 24, 4, 's26')
    a('s_waitcnt vmcnt(0) lgkmcnt(0)')
    for i in range(32): a(f'v_add_f32 v{ACC+i}, v{ACC+i}, v{ACC+96+i}')
    a('v_lshlrev_b32 v16, 16, v16')
    a('v_lshlrev_b32 v17, 16, v17')
    for th in range(2):
        for i in range(8):
            z = 64 + 8 * th + i; p = ACC + 16 * th + 2 * i
            a(f'v_add_f32 v{p}, v{p}, v{16+th}')
            a(f'v_add_f32 v{p+1}, v{p+1}, v{16+th}')
            a(f'v_lshlrev_b32 v18, 16, v{z}')
            a(f'v_and_b32 v19, 0xffff0000, v{z}')
            a(f'v_mul_f32 v{p}, v{p}, v18')
            a(f'v_mul_f32 v{p+1}, v{p+1}, v19')
            a(f'v_cvt_pk_bf16_f32 v{z}, v{p}, v{p+1}')
        a(f'global_store_dwordx4 v1, {vr(64+8*th,4)}, s[24:25]')
        a(f'global_store_dwordx4 v1, {vr(68+8*th,4)}, s[24:25] offset:1024')
        if th == 0: add64(a, 24, 24, 88 * 1024)
    stamp(a, 4, 2, 20)
    a('s_endpgm')

def gen_p2():
    a = Asm()
    name = 'p2_kernel'
    kernel_head(a, name)
    a('s_cmp_ge_u32 s2, 256')
    a('s_cbranch_scc0 P2_go')
    a('s_endpgm')
    a.label('P2_go')
    a(f's_load_dwordx2 s[4:5], s[0:1], {A_WS}')
    a('v_lshrrev_b32 v1, 6, v0')
    a('v_and_b32 v0, 63, v0')
    a('v_readfirstlane_b32 s13, v1')
    a('s_and_b32 s30, s2, 7')
    a('s_lshr_b32 s31, s2, 3')
    a('v_lshlrev_b32 v1, 4, v0')
    a(f'v_mov_b32 v2, {LDS_FLG}')
    a('v_mov_b64 v[4:5], 0')
    a('v_mov_b64 v[6:7], 0')
    a('ds_write_b128 v2, v[4:7]')
    a('s_waitcnt lgkmcnt(0)')
    stamp_init(a, 13)
    stamp(a, 0, 2, 8)
    a('s_cmp_ge_u32 s13, 4')
    a('s_cbranch_scc1 P2_gemm')
    gen_att(a)
    a.label('P2_gemm')
    gen_gemm(a)
    return a, name, kernel_desc(name, 256), f'; @launch kernel={name} grid=(256,1,1) block=(512,1,1) lds={LDS_P2}'

def gen_nrm():
    a = Asm()
    name = 'nrm_kernel'
    kernel_head(a, name)
    a('s_cmp_ge_u32 s2, 224')
    a('s_cbranch_scc0 N_go')
    a('s_endpgm')
    a.label('N_go')
    a(f's_load_dwordx2 s[4:5], s[0:1], {A_WS}')
    a('v_lshrrev_b32 v1, 6, v0')
    a('v_and_b32 v0, 63, v0')
    a('v_readfirstlane_b32 s13, v1')
    a('s_and_b32 s30, s2, 7')
    a('s_lshr_b32 s31, s2, 3')
    a('v_lshlrev_b32 v1, 4, v0')
    a('s_add_u32 s13, s13, 4')
    a('s_waitcnt lgkmcnt(0)')
    a('s_sub_u32 s13, s13, 4')
    a('s_mul_i32 s26, s31, 37')
    a('s_lshr_b32 s26, s26, 8')
    a('s_mul_i32 s27, s26, 7')
    a('s_sub_u32 s15, s31, s27')
    a('s_lshl_b32 s14, s30, 2')
    a('s_add_u32 s14, s14, s26')
    a('s_mul_i32 s23, s13, 24576')
    a('s_lshl_b32 s16, s15, 2')
    a('s_add_u32 s16, s16, s13')
    a('s_mul_i32 s26, s14, 56')
    a('s_add_u32 s26, s26, s16')
    a('s_lshl_b32 s18, s26, 11')
    a(f's_add_u32 s26, s18, {WS_Z2R}')
    add64(a, 24, 4, 's26')
    for b in range(2):
        a(f'global_load_dwordx4 {vr(64+8*b,4)}, v1, s[24:25]')
        a(f'global_load_dwordx4 {vr(68+8*b,4)}, v1, s[24:25] offset:1024')
        if b == 0: add64(a, 24, 24, 28 * 2048)
    a('v_and_b32 v5, 31, v0')
    a('v_lshlrev_b32 v6, 3, v5')
    a('s_lshl_b32 s26, s14, 9')
    a(f's_add_u32 s26, s26, {WS_ST}')
    add64(a, 24, 4, 's26')
    for g8 in range(8):
        for b in range(2):
            a(f'global_load_dwordx2 {vr(80+16*b+2*g8,2)}, v6, s[24:25] offset:{256*b}')
        if g8 < 7: add64(a, 24, 24, 16384)
    a('s_waitcnt vmcnt(0)')
    for b in range(2):
        B = 80 + 16 * b
        for g8 in range(1, 8): a(f'v_pk_add_f32 {vr(B,2)}, {vr(B,2)}, {vr(B+2*g8,2)}')
        a(f'v_mul_f32 v{B}, {f32(1/896)}, v{B}')
        a(f'v_mul_f32 v{B+1}, {f32(1/896)}, v{B+1}')
        a(f'v_fma_f32 v{B+1}, -v{B}, v{B}, v{B+1}')
        a(f'v_max_f32 v{B+1}, 0, v{B+1}')
        a(f'v_add_f32 v{B+1}, {f32(1e-5)}, v{B+1}')
        a(f'v_rsq_f32 v{B+1}, v{B+1}')
        a('s_nop 0')
        a(f'v_mul_f32 v{B}, v{B}, v{B+1}')
    a('v_lshlrev_b32 v9, 6, v5')
    a('v_lshrrev_b32 v7, 5, v0')
    a('v_lshl_add_u32 v9, v7, 3, v9')
    a('s_add_u32 s26, s23, 16384')
    a('v_add_u32 v9, s26, v9')
    a('v_lshlrev_b32 v10, 9, v7')
    a('v_bfe_u32 v7, v0, 2, 2')
    a('v_lshl_add_u32 v10, v7, 6, v10')
    a('v_bfe_u32 v7, v0, 4, 1')
    a('v_lshl_add_u32 v10, v7, 5, v10')
    a('v_and_b32 v7, 3, v0')
    a('v_lshl_add_u32 v10, v7, 3, v10')
    a('v_add_u32 v10, s26, v10')
    for b in range(2):
        B = 80 + 16 * b
        for i in range(8):
            z = 64 + 8 * b + i
            a(f'v_lshlrev_b32 v12, 16, v{z}')
            a(f'v_and_b32 v13, 0xffff0000, v{z}')
            a(f'v_fma_f32 v12, v12, v{B+1}, -v{B}')
            a(f'v_fma_f32 v13, v13, v{B+1}, -v{B}')
            a(f'v_cvt_pk_bf16_f32 v{z}, v12, v13')
        for i in range(4):
            a(f'ds_write_b64 v9, {vr(64+8*b+2*i,2)} offset:{2048*b+16*i}')
    a('s_waitcnt lgkmcnt(0)')
    for k in range(4):
        a(f'ds_read_b64_tr_b16 {vr(80+4*k,2)}, v10 offset:{1024*k}')
        a(f'ds_read_b64_tr_b16 {vr(82+4*k,2)}, v10 offset:{1024*k+256}')
    a('s_lshl_b32 s26, s16, 7')
    a('s_lshl_b32 s27, s14, 2')
    a('s_add_u32 s26, s26, s27')
    a('s_lshl_b32 s26, s26, 10')
    a(f's_add_u32 s26, s26, {WS_Z2N}')
    add64(a, 24, 4, 's26')
    a('s_waitcnt lgkmcnt(0)')
    for k in range(4):
        a(f'global_store_dwordx4 v1, {vr(80+4*k,4)}, s[24:25] offset:{1024*k}')
    a('s_endpgm')
    return a, name, kernel_desc(name, 128), f'; @launch kernel={name} grid=(224,1,1) block=(256,1,1) lds=98304'
```

```python
from common import *
MF = 'v_mfma_f32_32x32x16_bf16'
SLOT = 32768
def gen_p3():
    a = Asm()
    name = 'p3_kernel'
    kernel_head(a, name)
    a('s_cmp_ge_u32 s2, 256')
    a('s_cbranch_scc0 P3_go')
    a('s_endpgm')
    a.label('P3_go')
    a(f's_load_dwordx2 s[4:5], s[0:1], {A_WS}')
    a(f's_load_dwordx2 s[6:7], s[0:1], {A_WO}')
    a(f's_load_dwordx2 s[28:29], s[0:1], {A_WOUT}')
    a(f's_load_dwordx2 s[32:33], s[0:1], {A_X}')
    a(f's_load_dwordx2 s[34:35], s[0:1], {A_OUT}')
    a('v_lshrrev_b32 v1, 6, v0')
    a('v_and_b32 v0, 63, v0')
    a('v_readfirstlane_b32 s13, v1')
    a('s_and_b32 s14, s2, 7')
    a('s_lshl_b32 s14, s14, 2')
    a('s_lshr_b32 s26, s2, 6')
    a('s_add_u32 s14, s14, s26')
    a('s_bfe_u32 s15, s2, 0x30003')
    a('v_lshlrev_b32 v1, 4, v0')
    a('v_lshrrev_b32 v10, 3, v0')
    a('v_lshlrev_b32 v2, 10, v10')
    a('v_and_b32 v11, 7, v0')
    a('v_and_b32 v10, 2, v10')
    a('v_lshlrev_b32 v10, 1, v10')
    a('v_xor_b32 v11, v11, v10')
    a('v_lshl_add_u32 v2, v11, 4, v2')
    a('s_lshr_b32 s16, s13, 1')
    a('s_and_b32 s17, s13, 1')
    a('s_lshl_b32 s26, s14, 1')
    a('s_add_u32 s26, s26, s16')
    a('s_mul_i32 s18, s26, 88')
    a('s_lshl_b32 s27, s17, 2')
    a('s_add_u32 s18, s18, s27')
    a('s_lshl_b32 s18, s18, 10')
    a('s_lshl_b32 s19, s13, 15')
    a('s_lshl_b32 s27, s15, 7')
    a('s_add_u32 s19, s19, s27')
    a('s_mov_b32 s36, s19')
    a('s_lshl_b32 s22, s13, 12')
    a('s_waitcnt lgkmcnt(0)')
    stamp_init(a, 13); stamp(a, 0, 3, 60)
    a('s_mov_b32 s8, s6'); a('s_mov_b32 s9, s7'); a(f's_mov_b32 s10, {512*1024}'); a('s_mov_b32 s11, 0x20000')
    add64(a, 40, 4, WS_ACT)
    a(f's_mov_b32 s42, {64*88*1024}'); a('s_mov_b32 s43, 0x20000')
    a('s_mov_b32 s20, 0')
    a('s_mov_b32 s21, s22')
    def issue():
        for i in range(4):
            a(f's_add_u32 m0, s21, {1024*i}')
            a(f's_add_u32 s26, s18, {1024*i}')
            a('buffer_load_dwordx4 v1, s[40:43], s26 offen lds')
        for i in range(4):
            a(f's_add_u32 m0, s21, {16384+1024*i}')
            a(f's_add_u32 s26, s19, {8192*i}')
            a('buffer_load_dwordx4 v2, s[8:11], s26 offen lds')
        a('s_add_u32 s18, s18, 8192')
        a('s_add_u32 s19, s19, 131072')
        a(f's_add_u32 s21, s21, {SLOT}')
        a(f's_sub_u32 s26, s21, {5*SLOT}')
        a(f's_cmp_ge_u32 s21, {5*SLOT}')
        a('s_cselect_b32 s21, s26, s21')
    a('v_and_b32 v10, 31, v0')
    a('v_lshlrev_b32 v6, 10, v10')
    a('v_lshrrev_b32 v11, 5, v0')
    a('v_lshl_add_u32 v6, v11, 4, v6')
    a('s_lshl_b32 s26, s14, 1')
    a('s_add_u32 s26, s26, s16')
    a('s_lshl_b32 s26, s26, 15')
    a('s_lshl_b32 s27, s15, 7')
    a('s_add_u32 s26, s26, s27')
    a('s_lshl_b32 s27, s17, 6')
    a('s_add_u32 s26, s26, s27')
    a('v_add_u32 v6, s26, v6')
    a('global_load_dwordx4 v[48:51], v6, s[32:33]')
    a('global_load_dwordx4 v[52:55], v6, s[32:33] offset:32')
    for c in range(4): issue()
    a('s_mov_b32 s8, s28'); a('s_mov_b32 s9, s29'); a(f's_mov_b32 s10, {896*1024}')
    a('s_mov_b32 s19, s36')
    a('s_lshl_b32 s26, s16, 13')
    a('v_add_u32 v3, s26, v1')
    a('v_lshlrev_b32 v4, 9, v11')
    a('v_bfe_u32 v10, v0, 2, 2')
    a('v_lshl_add_u32 v4, v10, 7, v4')
    a('v_lshrrev_b32 v10, 1, v10')
    a('v_xor_b32 v10, s17, v10')
    a('v_lshl_add_u32 v4, v10, 6, v4')
    a('v_bfe_u32 v10, v0, 4, 1')
    a('v_lshl_add_u32 v4, v10, 5, v4')
    a('v_and_b32 v10, 3, v0')
    a('v_lshl_add_u32 v4, v10, 3, v4')
    a('v_add_u32 v4, 16384, v4')
    for i in range(8): a(f'v_mov_b64 {vr(16+2*i,2)}, 0')
    a('s_mov_b32 s23, 11')
    a('s_mov_b32 s24, 0')
    a.label('P3_loop')
    a('s_waitcnt vmcnt(24)')
    a('s_barrier')
    a('v_add_u32 v7, s24, v3')
    a('v_add_u32 v8, s24, v4')
    AF, WF = 64, 96
    def rd(ks):
        a(f'ds_read_b128 {vr(AF+4*ks,4)}, v7 offset:{1024*ks}')
        a(f'ds_read_b64_tr_b16 {vr(WF+4*ks,2)}, v8 offset:{2048*ks}')
        a(f'ds_read_b64_tr_b16 {vr(WF+4*ks+2,2)}, v8 offset:{2048*ks+1024}')
    for ks in range(4): rd(ks)
    issue()
    for ks in range(8):
        if ks + 4 < 8: rd(ks + 4)
        a(f's_waitcnt lgkmcnt({3*min(4, 7-ks)})')
        a(f'{MF} {vr(16,16)}, {vr(WF+4*ks,4)}, {vr(AF+4*ks,4)}, {vr(16,16)}')
    a(f's_add_u32 s24, s24, {SLOT}')
    a(f's_sub_u32 s26, s24, {5*SLOT}')
    a(f's_cmp_ge_u32 s24, {5*SLOT}')
    a('s_cselect_b32 s24, s26, s24')
    a('s_cmp_le_u32 s23, 5')
    a('s_cselect_b32 s42, 0, s42')
    a('s_sub_u32 s23, s23, 1')
    a('s_cmp_lg_u32 s23, 0')
    a('s_cbranch_scc1 P3_loop')
    stamp(a, 1, 3, 60)
    a('s_nop 9')
    for q in range(2):
        for i in range(4):
            a(f'v_permlane32_swap_b32 v{16+8*q+i}, v{20+8*q+i}')
    for q in range(2):
        for i in range(4):
            x = 48 + 4 * q + i; p = 16 + 8 * q + 2 * i
            a(f'v_lshlrev_b32 v40, 16, v{x}')
            a(f'v_and_b32 v41, 0xffff0000, v{x}')
            a(f'v_add_f32 v{p}, v{p}, v40')
            a(f'v_add_f32 v{p+1}, v{p+1}, v41')
            a(f'v_cvt_pk_bf16_f32 v{x}, v{p}, v{p+1}')
    a('global_store_dwordx4 v6, v[48:51], s[34:35]')
    a('global_store_dwordx4 v6, v[52:55], s[34:35] offset:32')
    stamp(a, 2, 3, 60)
    a('s_endpgm')
    return a, name, kernel_desc(name, 128), f'; @launch kernel={name} grid=(256,1,1) block=(256,1,1) lds={5*SLOT}'
```

```python
import sys, importlib
from common import *
import asmlib
HEADER = open('parallel_sum__mha_block__mixer_gmlp__prompt.s.ref').read().split('; Override')[0]
def assemble(parts, path):
    out = HEADER
    for a, name, desc, launch in parts: out += launch + '\n'
    out += '.amdgcn_target "amdgcn-amd-amdhsa--gfx950"\n.text\n'
    nbad = 0
    for a, name, desc, launch in parts:
        bad = asmlib.check(a.lines, name)
        for b in bad: print('HAZARD', b)
        nbad += len(bad)
        out += a.text()
    out += '.section .rodata,"a"\n'
    for a, name, desc, launch in parts:
        out += '.p2align 6\n' + desc
    open(path, 'w').write(out)
    return nbad
if __name__ == '__main__':
    from k0 import gen_k0
    from p1 import gen_p1
    parts = [gen_k0(bool(int(os.environ.get('MIMIC', 1)))), gen_p1()]
    try:
        from p2 import gen_p2, gen_nrm
        parts.append(gen_nrm())
        parts.append(gen_p2())
        from p3 import gen_p3
        parts.append(gen_p3())
    except ImportError as e:
        print('partial build:', e)
    assemble(parts, sys.argv[1] if len(sys.argv) > 1 else 'dev.s')
```

```python
import sys, os
from build import *
from k0 import gen_k0
from p1 import gen_p1
from p2 import gen_p2, gen_nrm
from p3 import gen_p3
def empty(i):
    a = Asm(); name = f'empty{i}_kernel'
    kernel_head(a, name); a('s_endpgm')
    return a, name, kernel_desc(name, 8), f'; @launch kernel={name} grid=(256,1,1) block=(64,1,1) lds=0'
base = [gen_k0(True), gen_p1(), gen_nrm(), gen_p2(), gen_p3()]
assemble(base + [empty(i) for i in range(4)], 'v_e4.s')
assemble([empty(9)] + base, 'v_e1.s')
def probe(kind, val, path):
    a, name, desc, launch = gen_p3()
    i = max(k for k, l in enumerate(a.lines) if l.startswith('v_permlane32_swap'))
    if kind == 'scale':
        extra = [f'v_mul_f32 v{16+r}, {f32(val)}, v{16+r}' for r in range(16)]
    else:
        extra = ['s_cmp_eq_u32 s2, 5', 's_cbranch_scc0 PRB', 's_cmp_eq_u32 s13, 0', 's_cbranch_scc0 PRB', 's_mov_b64 exec, 1', f'v_add_f32 v16, {f32(val)}, v16', 's_mov_b64 exec, -1', 'PRB:']
    a.lines[i+1:i+1] = extra
    assemble(base[:4] + [(a, name, desc, launch)], path)
probe('one', 12.0, 'v_o12.s')
probe('one', 40.0, 'v_o40.s')
probe('scale', 1.015, 'v_s15.s')
probe('scale', 1.04, 'v_s40.s')
```

```python
from asmlib import *
import struct
MB = 1 << 20
WS_XN = 0
WS_QF = 2 * MB
WS_KV = 4 * MB
WS_Z1 = 8 * MB
WS_Z2R = 12 * MB
WS_Z2N = 16 * MB
WS_ACT = 20 * MB
WS_ST = 26 * MB
A_X, A_WQKV, A_WO, A_BX, A_WIN, A_WSP, A_BSP, A_WOUT, A_OUT, A_DBG, A_WS = [8 * i for i in range(11)]
def f32(x): return '0x%08x' % struct.unpack('<I', struct.pack('<f', x))[0]
LOG2E = 1.4426950408889634
QSCALE = 0.25 * LOG2E
GC0 = -2.0 * LOG2E * 0.7978845608028654
GC1 = GC0 * 0.044715

def kernel_head(a, name):
    a(f'.globl {name}')
    a('.p2align 8')
    a(f'.type {name},@function')
    a.label(name)

def kernel_desc(name, vgpr, sgpr=100):
    acc = (vgpr + 3) // 4 * 4
    return f'''.amdhsa_kernel {name}
  .amdhsa_next_free_vgpr {vgpr}
  .amdhsa_next_free_sgpr {sgpr}
  .amdhsa_accum_offset {acc}
  .amdhsa_group_segment_fixed_size 0
  .amdhsa_kernarg_size 88
  .amdhsa_user_sgpr_count 2
  .amdhsa_user_sgpr_kernarg_segment_ptr 1
  .amdhsa_system_sgpr_workgroup_id_x 1
  .amdhsa_float_denorm_mode_32 3
.end_amdhsa_kernel
'''

def add64(a, dst, src, off):
    a(f's_add_u32 s{dst}, s{src}, {off}')
    a(f's_addc_u32 s{dst+1}, s{src+1}, 0')

def round_bf16(a, v):
    a(f'v_cvt_pk_bf16_f32 v{v}, v{v}, v{v}')
    a(f'v_and_b32 v{v}, 0xffff0000, v{v}')

def csel(a, dst, t, f):
    a(f's_mov_b32 s{dst}, {f}')
    a(f's_cselect_b32 s{dst}, {t}, s{dst}')

import os
STAMPS = bool(int(os.environ.get('STAMPS', '0')))
WS_TS = 28 * MB
def stamp(a, idx, kern, v0=250, wave_s=None):
    if not STAMPS: return
    va = v0 + 2
    if v0 % 2: va = v0; v0 += 1
    a('s_memtime s[92:93]')
    a('s_memrealtime s[96:97]')
    a(f's_lshl_b32 s94, s90, 8')
    if isinstance(idx, tuple):
        a(f's_lshl_b32 s95, {idx[0]}, 3'); a('s_add_u32 s94, s94, s95'); idx = idx[1]
    a(f's_add_u32 s94, s94, {WS_TS + kern * 524288 + idx * 8}')
    a('s_waitcnt lgkmcnt(0)')
    a(f'v_mov_b32 v{v0}, s92')
    a(f'v_mov_b32 v{v0+1}, s93')
    a(f'v_mov_b32 v{va}, s94')
    a(f'global_store_dwordx2 v{va}, v[{v0}:{v0+1}], s[4:5]')
    a('s_nop 1')
    a(f'v_mov_b32 v{v0}, s96')
    a(f'v_mov_b32 v{v0+1}, s97')
    a(f'global_store_dwordx2 v{va}, v[{v0}:{v0+1}], s[4:5] offset:128')
def stamp_init(a, wave_sgpr):
    if not STAMPS: return
    a('s_lshl_b32 s90, s2, 3')
    a(f's_add_u32 s90, s90, s{wave_sgpr}')
WS_GR = 27 * MB
WS_EP = 27 * MB + 768 * 1024
TAGX = 0x5bd1e995
```

```python
from common import *
XF = 128; ACC = 16; WF = 32; T = 48; STASH = 80; CV = 100; SEL = 96
MISC = 131072
L_CS = MISC
L_RT = MISC + 1024
L_TAG = MISC + 3072
L_XS = MISC + 4096
L_TR = MISC + 8192
MF = 'v_mfma_f32_32x32x16_bf16'
PRO = STAMPS and bool(os.environ.get('PRO'))
FINE = STAMPS and bool(os.environ.get('FINE'))
def mfma_block(a, swap):
    def rd(ks):
        b = WF + 4 * (ks % 4)
        off = 2048 * ks
        a(f'ds_read_b64_tr_b16 v[{b}:{b+1}], v4 offset:{off}')
        a(f'ds_read_b64_tr_b16 v[{b+2}:{b+3}], v4 offset:{off+512}')
    for ks in range(3): rd(ks)
    for ks in range(32):
        if ks + 3 < 32: rd(ks + 3)
        a(f's_waitcnt lgkmcnt({2 * min(3, 31 - ks)})')
        w = vr(WF + 4 * (ks % 4), 4); x = vr(XF + 4 * ks, 4)
        A, B = (x, w) if swap else (w, x)
        c = '0' if ks == 0 else vr(ACC, 16)
        a(f'{MF} {vr(ACC,16)}, {A}, {B}, {c}')

def issue_H(a, pair, kh):
    slot = (2 * pair + kh) % 4
    a(f's_add_u32 s26, s{18+pair}, s22')
    if kh:
        a('s_lshl_b32 s27, s12, 8')
        a('s_add_u32 s26, s26, s27')
    a('s_lshl_b32 s27, s12, 3')
    for i in range(4):
        a(f's_add_u32 m0, s23, {slot*32768 + i*1024}')
        if i: a('s_add_u32 s26, s26, s27')
        else: a('s_nop 0')
        a('buffer_load_dwordx4 v2, s[8:11], s26 offen lds')

def gen_p1f():
    a = Asm()
    name = 'p1_kernel'
    kernel_head(a, name)
    a('s_cmp_ge_u32 s2, 256')
    a('s_cbranch_scc0 P1_go')
    a('s_endpgm')
    a.label('P1_go')
    a(f's_load_dwordx2 s[4:5], s[0:1], {A_WS}')
    a(f's_load_dwordx4 s[44:47], s[0:1], {A_X}')
    a(f's_load_dwordx2 s[28:29], s[0:1], {A_WIN}')
    a('v_lshrrev_b32 v1, 6, v0')
    a('v_and_b32 v0, 63, v0')
    a('v_readfirstlane_b32 s13, v1')
    a('s_and_b32 s43, s2, 1')
    a('s_lshl_b32 s43, s43, 3')
    a('s_bfe_u32 s31, s2, 0x30003')
    a('s_add_u32 s43, s43, s31')
    a('s_lshr_b32 s31, s2, 6')
    a('s_lshl_b32 s31, s31, 2')
    a('s_bfe_u32 s32, s2, 0x20001')
    a('s_add_u32 s31, s31, s32')
    a('s_lshr_b32 s16, s31, 3')
    a('s_and_b32 s33, s31, 7')
    a('s_lshr_b32 s14, s13, 2')
    a('s_and_b32 s30, s13, 3')
    a('s_lshl_b32 s15, s43, 2')
    a('s_add_u32 s15, s15, s30')
    a('v_lshrrev_b32 v10, 3, v0')
    a('v_and_b32 v11, 7, v0')
    a('v_lshrrev_b32 v12, 1, v10')
    a('v_xor_b32 v12, v12, v11')
    a('v_lshlrev_b32 v5, 10, v10')
    a('v_lshl_add_u32 v5, v12, 4, v5')
    a('v_xor_b32 v6, 64, v5')
    a('s_cmp_eq_u32 s16, 0')
    csel(a, 12, 3072, 3584)
    a('s_cbranch_scc0 P1_zcols')
    a('s_lshl_b32 s18, s33, 7')
    a('s_add_u32 s19, s18, 1024')
    a('s_add_u32 s20, s18, 2048')
    a('s_mov_b32 s21, 0')
    a('s_mov_b32 s34, 0')
    a('s_branch P1_cdone')
    a.label('P1_zcols')
    a('s_lshr_b32 s21, s33, 1')
    a('s_add_u32 s21, s21, 10')
    a('s_lshl_b32 s21, s21, 7')
    a('s_cmp_lt_u32 s33, 6')
    a('s_cbranch_scc0 P1_z67')
    a('s_lshl_b32 s18, s33, 8')
    a('s_add_u32 s18, s18, 1792')
    a('s_add_u32 s19, s18, 128')
    a('s_lshl_b32 s20, s33, 7')
    a('s_mov_b32 s34, 2')
    a('s_branch P1_cdone')
    a.label('P1_z67')
    a('s_lshl_b32 s18, s33, 7')
    a(f's_add_u32 s18, s18, {1792 + 6 * 128}')
    a('s_lshl_b32 s19, s33, 8')
    a(f's_sub_u32 s19, s19, {6 * 128}')
    a('s_add_u32 s20, s19, 128')
    a('s_mov_b32 s34, 1')
    a.label('P1_cdone')
    a('s_and_b32 s42, s33, 1')
    a('s_lshl_b32 s22, s13, 5')
    a('s_mul_i32 s22, s22, s12')
    a('s_lshl_b32 s23, s13, 12')
    a('v_mul_u32_u24 v2, s12, v10')
    a('v_and_b32 v10, 2, v10')
    a('v_lshlrev_b32 v10, 1, v10')
    a('v_xor_b32 v11, v11, v10')
    a('v_lshl_add_u32 v2, v11, 4, v2')
    a('s_waitcnt lgkmcnt(0)')
    stamp_init(a, 13); stamp(a, 0, 1, 76)
    a('s_cmp_eq_u32 s16, 0')
    a('s_cselect_b32 s8, s46, s28')
    a('s_cselect_b32 s9, s47, s29')
    csel(a, 10, 512 * 3072, 512 * 3584)
    a('s_mov_b32 s11, 0x20000')
    a('s_mov_b32 s48, s44'); a('s_mov_b32 s49, s45'); a(f's_mov_b32 s50, {2048*1024}'); a('s_mov_b32 s51, 0x20000')
    issue_H(a, 0, 0)
    a('s_lshl_b32 s26, s15, 15')
    a('s_lshl_b32 s27, s14, 7')
    a('s_add_u32 s26, s26, s27')
    a('s_lshl_b32 s37, s30, 13')
    a('s_lshl_b32 s27, s14, 12')
    a('s_add_u32 s27, s27, s37')
    for i in range(4):
        for j in range(4):
            a(f's_add_u32 m0, s27, {(1+i)*32768 + j*1024}')
            a(f's_add_u32 s3, s26, {i*256 + j*8192}')
            a(f'buffer_load_dwordx4 v{6 if j&1 else 5}, s[48:51], s3 offen lds')
    a('v_lshlrev_b32 v1, 4, v0')
    a('s_mov_b32 s41, 0')
    a('s_add_u32 s26, s13, s16')
    a('s_cmp_eq_u32 s26, 8')
    a('s_cbranch_scc0 P1_noep')
    a(f's_load_dwordx2 s[52:53], s[0:1], {A_DBG}')
    a(f's_add_u32 s24, s4, {WS_EP}')
    a('s_addc_u32 s25, s5, 0')
    a('s_load_dword s41, s[24:25], 0')
    a('v_mov_b32 v16, 0'); a('v_mov_b32 v17, 1')
    a('s_mov_b64 exec, 1')
    a('s_waitcnt lgkmcnt(0)')
    a('global_atomic_add v7, v16, v17, s[52:53] sc0')
    a('s_mov_b64 exec, -1')
    a.label('P1_noep')
    a('v_and_b32 v12, 31, v0')
    a('v_lshlrev_b32 v8, 7, v12')
    a('v_bfe_u32 v13, v0, 1, 3')
    a('v_lshrrev_b32 v14, 5, v0')
    a('v_xor_b32 v13, v13, v14')
    a('v_lshl_add_u32 v8, v13, 4, v8')
    a('v_add_u32 v8, s37, v8')
    a('v_add_u32 v8, 0x8000, v8')
    for k in range(1, 4): a(f'v_xor_b32 v{8+k}, {32*k}, v8')
    a('v_lshlrev_b32 v3, 10, v14')
    a('v_bfe_u32 v13, v0, 2, 2')
    a('v_lshl_add_u32 v3, v13, 7, v3')
    a('v_lshrrev_b32 v13, 1, v13')
    a('v_lshl_add_u32 v3, v13, 6, v3')
    a('v_bfe_u32 v13, v0, 4, 1')
    a('v_lshl_add_u32 v3, v13, 5, v3')
    a('v_and_b32 v15, 3, v0')
    a('v_lshl_add_u32 v3, v15, 3, v3')
    a('v_mov_b32 v98, 0x3f803f80')
    a('v_mov_b64 v[96:97], 0')
    a('s_cmp_eq_u32 s14, 0')
    a('s_cselect_b64 vcc, 0, -1')
    for i in range(4):
        a(f's_waitcnt vmcnt({[12, 8, 8, 8][i] + (2 * i if PRO else 0)})')
        a('s_barrier')
        if PRO: stamp(a, 2 + i, 1, 76)
        if i >= 1: issue_H(a, i >> 1, i & 1)
        for c in range(2):
            for k in range(4):
                ks = 8 * i + 4 * c + k
                a(f'ds_read_b128 {vr(XF+4*ks,4)}, v{8+k} offset:{c*4096}')
        if i < 3:
            for k in range(4): a(f'v_add_u32 v{8+k}, 0x8000, v{8+k}')
        a('s_cbranch_vccnz P1_xb%d' % i)
        for c in range(2):
            if c: a.label('P1_xb%d' % i)
            a(f's_waitcnt lgkmcnt({4*(1-c)})')
            for r in range(16):
                x = XF + 32 * i + 16 * c + r
                a(f'v_dot2c_f32_bf16 v96, v{x}, v98')
                a(f'v_dot2c_f32_bf16 v97, v{x}, v{x}')
            if c == 0:
                a('s_waitcnt lgkmcnt(0)')
                a('s_branch P1_xd%d' % i)
        a.label('P1_xd%d' % i)
    stamp(a, 6 if PRO else 1, 1, 76)
    a('s_waitcnt vmcnt(8)')
    a('s_barrier')
    a('v_mov_b64 v[16:17], 0'); a('v_mov_b64 v[18:19], 0')
    a(f'v_add_u32 v12, {L_CS}, v1')
    a('ds_write_b128 v12, v[16:19]')
    a('s_cmp_eq_u32 s13, 7')
    a('s_cbranch_scc0 P1_notag')
    a('s_xor_b32 s41, s41, ' + hex(TAGX))
    a('v_readfirstlane_b32 s54, v7')
    a(f'v_mov_b32 v12, {L_TAG}')
    a('v_mov_b32 v13, s41')
    a('ds_write_b32 v12, v13')
    a.label('P1_notag')
    a('v_mov_b32 v12, v96'); a('v_mov_b32 v13, v97')
    a('s_nop 0')
    a('v_permlane32_swap_b32 v96, v12')
    a('v_permlane32_swap_b32 v97, v13')
    a('v_add_f32 v96, v96, v12')
    a('v_add_f32 v97, v97, v13')
    a('v_and_b32 v12, 31, v0')
    a('s_lshl_b32 s26, s13, 8')
    a(f's_add_u32 s26, s26, {L_XS}')
    a('v_lshl_add_u32 v12, v12, 3, s26')
    a('ds_write_b64 v12, v[96:97]')
    a('v_xor_b32 v12, 0x400, v12')
    a('s_waitcnt lgkmcnt(0)')
    a('s_barrier')
    a('ds_read_b64 v[12:13], v12')
    a(f'v_mov_b32 v16, {L_TAG}')
    a('ds_read_b32 v16, v16')
    a('s_waitcnt lgkmcnt(0)')
    a('v_add_f32 v96, v96, v12')
    a('v_add_f32 v97, v97, v13')
    a('v_readfirstlane_b32 s41, v16')
    a(f'v_mul_f32 v116, {f32(-1/512)}, v96')
    a(f'v_mul_f32 v97, {f32(1/512)}, v97')
    a('v_fma_f32 v97, -v116, v116, v97')
    a('v_max_f32 v97, 0, v97')
    a(f'v_add_f32 v97, {f32(1e-5)}, v97')
    a('v_rsq_f32 v118, v97')
    a('v_sqrt_f32 v119, v97')
    a('s_lshl_b32 s26, s13, 8')
    a(f's_add_u32 s26, s26, {L_RT}')
    a(f'v_mul_f32 v117, {f32(QSCALE)}, v118')
    a('v_mul_f32 v13, v116, v118')
    a(f'v_mul_f32 v121, {f32(GC0)}, v118')
    a('v_mul_f32 v120, v118, v118')
    a(f'v_mul_f32 v120, {f32(0.044715)}, v120')
    a('v_mul_f32 v120, v120, v121')
    a('v_and_b32 v12, 31, v0')
    a('v_lshl_add_u32 v12, v12, 2, s26')
    a('ds_write2_b32 v12, v118, v13 offset0:0 offset1:32')
    a('v_lshl_add_u32 v9, v14, 4, s26')
    a(f'v_lshlrev_b32 v8, 4, v14')
    a(f'v_add_u32 v8, {L_CS}, v8')
    a('v_and_b32 v10, 31, v0')
    a('v_lshlrev_b32 v10, 2, v10')
    a(f'v_add_u32 v10, {L_CS}, v10')
    a('v_bfe_u32 v13, v0, 4, 1')
    a('v_lshlrev_b32 v6, 17, v13')
    a('v_lshl_add_u32 v6, v14, 9, v6')
    a('v_and_b32 v13, 15, v0')
    a('v_lshl_add_u32 v6, v13, 4, v6')
    a('v_mov_b64 v[124:125], 0'); a('v_mov_b64 v[126:127], 0')
    a(f'v_mov_b64 {vr(SEL,2)}, 0'); a(f'v_mov_b64 {vr(SEL+2,2)}, 0')
    a('s_mov_b32 s24, 0x3f803f80'); a('s_mov_b32 s25, 0x3f803f80')
    a('s_mov_b32 exec_lo, 0x100001'); a('s_mov_b32 exec_hi, 0x100001')
    a(f'v_mov_b64 {vr(SEL,2)}, s[24:25]'); a(f'v_mov_b64 {vr(SEL+2,2)}, s[24:25]')
    a('s_mov_b64 exec, -1')
    a('s_mov_b32 s17, 0')
    a('s_mov_b32 s35, s14')
    a('s_mov_b32 s36, 0')
    a('s_mov_b32 s38, 0')
    a('s_mov_b32 s40, 0')

    def cs_pass(tag):
        a('s_lshl_b32 s24, s30, 14')
        a('s_add_u32 s27, s27, s24')
        a('v_xor_b32 v5, s26, v3')
        a('v_add_u32 v5, s27, v5')
        for k in range(8):
            a(f'ds_read_b64_tr_b16 {vr(T+4*k,2)}, v5 offset:{2048*k}')
            a(f'ds_read_b64_tr_b16 {vr(T+4*k+2,2)}, v5 offset:{2048*k+512}')
        a('s_lshl_b32 s3, s3, 7')
        a('v_add_u32 v5, s3, v10')
        a('s_setprio 2')
        for k in range(8):
            if k % 4 == 0: a(f's_waitcnt lgkmcnt({8 - 2*k})')
            c = '0' if k == 0 else vr(CV, 4)
            a(f'v_mfma_f32_16x16x32_bf16 {vr(CV,4)}, {vr(SEL,4)}, {vr(T+4*k,4)}, {c}')
        a('s_setprio 0')
        a('s_mov_b32 exec_hi, 0')
        a('s_nop 5')
        a(f'ds_add_f32 v5, v{CV}')
        a('s_mov_b32 exec_hi, -1')

    def sync(tag):
        if FINE:
            a('s_lshl_b32 s91, s38, 1'); stamp(a, ('s91', 2), 1, 76)
        a('s_bitcmp1_b32 s38, 0')
        a(f's_cbranch_scc1 P1_bar_{tag}')
        a('s_waitcnt lgkmcnt(0)')
        a('s_barrier')
        a(f's_branch P1_sd_{tag}')
        a.label(f'P1_bar_{tag}')
        a('s_cmp_eq_u32 s40, 0')
        a(f's_cbranch_scc0 P1_w2_{tag}')
        a('s_waitcnt vmcnt(0)')
        a.label(f'P1_w2_{tag}')
        a('s_waitcnt vmcnt(2) lgkmcnt(0)')
        a('s_barrier')
        a('s_mov_b32 s40, 0')
        a('s_cmp_eq_u32 s38, 1')
        a(f's_cbranch_scc0 P1_s3_{tag}')
        issue_H(a, 2, 0); issue_H(a, 2, 1)
        a(f's_branch P1_sd_{tag}')
        a.label(f'P1_s3_{tag}')
        a('s_add_u32 s26, s38, s16')
        a('s_cmp_eq_u32 s26, 4')
        a(f's_cbranch_scc0 P1_sd_{tag}')
        issue_H(a, 3, 0); issue_H(a, 3, 1)
        a.label(f'P1_sd_{tag}')
        if FINE:
            a('s_cmp_lt_u32 s38, 6'); a(f's_cbranch_scc0 P1_ns_{tag}')
            stamp(a, ('s91', 3), 1, 76)
            a.label(f'P1_ns_{tag}')
        a('s_add_u32 s38, s38, 1')

    a('s_cmp_eq_u32 s14, 0')
    a('s_cbranch_scc1 P1_loop')
    a('s_mov_b32 s26, 0'); a('s_mov_b32 s27, 0'); a('s_mov_b32 s3, 0')
    cs_pass('B0')
    a('s_waitcnt lgkmcnt(0)')
    a('s_barrier')
    a('s_mov_b32 s38, 1')

    a.label('P1_loop')
    a('s_lshl_b32 s26, s35, 6')
    a('v_xor_b32 v4, s26, v3')
    a('v_add_u32 v4, s36, v4')
    a('s_lshl_b32 s26, s16, 2')
    a('s_add_u32 s39, s26, s17')
    a('s_cmp_eq_u32 s39, 2')
    a('s_cbranch_scc1 P1_mfmaV')
    mfma_block(a, False)
    a('s_branch P1_mdone')
    a.label('P1_mfmaV')
    mfma_block(a, True)
    a.label('P1_mdone')
    sync('1')
    a('s_cmp_eq_u32 s14, 0')
    a('s_cbranch_scc0 P1_csB')
    a('s_cmp_eq_u32 s17, 3')
    a('s_cbranch_scc1 P1_epi')
    a('s_mov_b32 s26, 64')
    a('s_mov_b32 s27, s36')
    a('s_branch P1_cs')
    a.label('P1_csB')
    a('s_cmp_eq_u32 s39, 2')
    a('s_cbranch_scc1 P1_epi')
    a('s_lshl_b32 s26, s42, 6')
    a('s_cmp_eq_u32 s17, 2')
    a('s_cselect_b32 s26, s26, 0')
    a('s_xor_b32 s27, s36, 65536')
    a.label('P1_cs')
    a('s_lshl_b32 s3, s17, 1')
    a('s_add_u32 s3, s3, s14')
    a('s_add_u32 s3, s3, 1')
    cs_pass('L')
    a.label('P1_epi')
    a('s_lshl_b32 s3, s17, 8')
    a('s_lshl_b32 s26, s14, 7')
    a('s_add_u32 s3, s3, s26')
    a('s_cmp_eq_u32 s39, 2')
    a('s_cbranch_scc1 P1_epiV')
    a('v_add_u32 v5, s3, v8')
    for i in range(4): a(f'ds_read_b128 {vr(CV+4*i,4)}, v5 offset:{32*i}')
    P = lambda i: vr(ACC + 2 * i, 2)
    Q = lambda i: vr(T + 2 * i, 2)
    a('s_lshl_b32 s26, s33, 2')
    a('s_lshl_b32 s27, s14, 1')
    a('s_add_u32 s26, s26, s27')
    a('s_lshl_b32 s26, s26, 6')
    a('s_add_u32 s26, s26, s15')
    a('s_nop 3')
    a('s_waitcnt lgkmcnt(0)')
    for i in range(16): a(f'v_fmac_f32 v{ACC+i}, v{CV+i}, v116')
    a('s_cmp_ge_u32 s39, 4')
    a('s_cbranch_scc1 P1_epiZ')
    a('s_cmp_eq_u32 s39, 0')
    a('s_cbranch_scc0 P1_epiK')
    for i in range(16): a(f'v_mul_f32 v{ACC+i}, v{ACC+i}, v117')
    for i in range(8): a(f'v_cvt_pk_bf16_f32 v{T+i}, v{ACC+2*i}, v{ACC+2*i+1}')
    a('s_lshl_b32 s26, s26, 10')
    a(f's_add_u32 s26, s26, {WS_QF}')
    add64(a, 24, 4, 's26')
    a(f'global_store_dwordx4 v1, {vr(T,4)}, s[24:25]')
    add64(a, 24, 24, 65536)
    a(f'global_store_dwordx4 v1, {vr(T+4,4)}, s[24:25]')
    a('s_mov_b32 s40, 1')
    a('s_branch P1_next')
    a.label('P1_epiK')
    for i in range(16): a(f'v_mul_f32 v{ACC+i}, v{ACC+i}, v118')
    for i in range(8): a(f'v_cvt_pk_bf16_f32 v{T+i}, v{ACC+2*i}, v{ACC+2*i+1}')
    a('s_lshl_b32 s26, s26, 11')
    a(f's_add_u32 s26, s26, {WS_KV}')
    add64(a, 24, 4, 's26')
    a(f'global_store_dwordx4 v1, {vr(T,4)}, s[24:25]')
    add64(a, 24, 24, 131072)
    a(f'global_store_dwordx4 v1, {vr(T+4,4)}, s[24:25]')
    a('s_mov_b32 s40, 1')
    a('s_branch P1_next')
    a.label('P1_epiV')
    a('v_add_u32 v5, s3, v10')
    a(f'ds_read_b32 v{T+32-2}, v5')
    for i in range(4):
        a(f'ds_read_b128 {vr(CV+4*i,4)}, v9 offset:{32*i}')
        a(f'ds_read_b128 {vr(T+8+4*i,4)}, v9 offset:{128+32*i}')
    a('s_lshl_b32 s26, s33, 2')
    a('s_lshl_b32 s27, s14, 1')
    a('s_add_u32 s26, s26, s27')
    a('s_lshl_b32 s26, s26, 6')
    a('s_add_u32 s26, s26, s15')
    a('s_lshl_b32 s26, s26, 11')
    a(f's_add_u32 s26, s26, {WS_KV}')
    add64(a, 24, 4, 's26')
    a('s_waitcnt lgkmcnt(0)')
    for i in range(16): a(f'v_mul_f32 v{ACC+i}, v{ACC+i}, v{CV+i}')
    for i in range(16): a(f'v_fmac_f32 v{ACC+i}, v{T+8+i}, v{T+30}')
    for i in range(8): a(f'v_cvt_pk_bf16_f32 v{T+i}, v{ACC+2*i}, v{ACC+2*i+1}')
    a(f'global_store_dwordx4 v6, {vr(T,4)}, s[24:25] offset:1024')
    a(f'global_store_dwordx4 v6, {vr(T+4,4)}, s[24:25] offset:1280')
    a('s_mov_b32 s40, 1')
    a('s_branch P1_next')
    a.label('P1_epiZ')
    for i in range(16): a(f'v_mul_f32 v{T+i}, v{ACC+i}, v{ACC+i}')
    for i in range(16): a(f'v_fma_f32 v{T+i}, v{T+i}, v120, v121')
    for i in range(16): a(f'v_mul_f32 v{T+i}, v{T+i}, v{ACC+i}')
    for i in range(16): a(f'v_exp_f32 v{T+i}, v{T+i}')
    for i in range(16): a(f'v_fma_f32 v{T+i}, v{T+i}, v119, v119')
    for i in range(16): a(f'v_rcp_f32 v{T+i}, v{T+i}')
    for i in range(16): a(f'v_mul_f32 v{T+i}, v{T+i}, v{ACC+i}')
    a('s_cmp_lt_u32 s17, s34')
    a('s_cbranch_scc1 P1_epiZ2')
    for i in range(8): a(f'v_cvt_pk_bf16_f32 v{T+16+i}, v{T+2*i}, v{T+2*i+1}')
    a('s_cmp_eq_u32 s17, 1')
    a('s_cselect_b32 s26, s19, s20')
    a('s_cmp_eq_u32 s17, 3')
    a('s_cselect_b32 s26, s21, s26')
    a('s_lshr_b32 s26, s26, 6')
    a('s_add_u32 s26, s26, s35')
    a('s_mul_i32 s27, s15, 28')
    a('s_add_u32 s27, s27, s26')
    a('s_lshl_b32 s27, s27, 11')
    a(f's_add_u32 s26, s27, {WS_Z1}')
    add64(a, 24, 4, 's26')
    a(f'global_store_dwordx4 v1, {vr(T+16,4)}, s[24:25]')
    a(f'global_store_dwordx4 v1, {vr(T+20,4)}, s[24:25] offset:1024')
    a('s_mov_b32 s40, 1')
    a('s_branch P1_next')
    a.label('P1_epiZ2')
    for i in range(8):
        for k in range(2):
            a(f'v_add_f32 v{124+k}, v{124+k}, v{T+2*i+k}')
            a(f'v_fmac_f32 v{126+k}, v{T+2*i+k}, v{T+2*i+k}')
    a('s_cmp_eq_u32 s17, 0')
    a('s_cbranch_scc0 P1_st1')
    for st in range(2):
        if st: a.label('P1_st1')
        S = STASH + 8 * st
        for i in range(8): a(f'v_cvt_pk_bf16_f32 v{S+i}, v{T+2*i}, v{T+2*i+1}')
        if st == 0: a('s_branch P1_st2')
    a.label('P1_st2')
    a('s_add_u32 s26, s17, 1')
    a('s_cmp_eq_u32 s26, s34')
    a('s_cbranch_scc0 P1_next')
    a('v_add_f32 v124, v124, v125'); a('v_add_f32 v126, v126, v127')
    a(f'v_mov_b32 v{T}, v124'); a(f'v_mov_b32 v{T+2}, v126')
    a('s_lshl_b32 s26, s43, 3')
    a('s_add_u32 s26, s26, s33')
    a(f'v_permlane32_swap_b32 v124, v{T}')
    a(f'v_permlane32_swap_b32 v126, v{T+2}')
    a('s_lshl_b32 s26, s26, 1')
    a('s_add_u32 s26, s26, s14')
    a('s_lshl_b32 s26, s26, 11')
    a('s_lshl_b32 s27, s30, 8')
    a('s_add_u32 s26, s26, s27')
    a(f's_add_u32 s26, s26, {WS_GR}')
    add64(a, 24, 4, 's26')
    a(f'v_add_f32 v{T}, v124, v{T}')
    a(f'v_add_f32 v{T+2}, v126, v{T+2}')
    a(f'v_mov_b32 v{T+1}, s41'); a(f'v_mov_b32 v{T+3}, s41')
    a('v_lshrrev_b32 v5, 1, v1')
    a('s_mov_b32 exec_hi, 0')
    a(f'global_store_dwordx2 v5, {vr(T,2)}, s[24:25] sc1')
    a(f'global_store_dwordx2 v5, {vr(T+2,2)}, s[24:25] offset:1024 sc1')
    a('s_mov_b64 exec, -1')
    a('s_mov_b32 s40, 1')
    a.label('P1_next')
    a('s_add_u32 s17, s17, 1')
    a('s_xor_b32 s36, s36, 65536')
    a('s_add_u32 s26, s16, 6')
    a('s_cmp_ge_u32 s38, s26')
    a('s_cbranch_scc1 P1_fin')
    sync('2')
    a('s_sub_u32 s26, s16, s14')
    a('s_max_i32 s26, s26, 0')
    a('s_add_u32 s26, s26, 3')
    a('s_cmp_eq_u32 s17, 3')
    a('s_cselect_b32 s35, s42, s35')
    a('s_cmp_lt_u32 s17, s26')
    a('s_cbranch_scc1 P1_loop')
    a.label('P1_fin')
    if not FINE: stamp(a, 14, 1, 76)
    a('s_cmp_eq_u32 s16, 0')
    a('s_cbranch_scc0 P1_zfin')
    a(f's_load_dwordx2 s[24:25], s[0:1], {A_WSP}')
    a(f's_load_dwordx2 s[26:27], s[0:1], {A_WO}')
    a(f's_load_dwordx2 s[28:29], s[0:1], {A_WOUT}')
    a('s_lshl_b32 s3, s43, 3')
    a('s_add_u32 s3, s3, s33')
    a('s_lshl_b32 s3, s3, 3')
    a('s_add_u32 s3, s3, s13')
    a('v_lshlrev_b32 v5, 7, v0')
    a('s_lshl_b32 s31, s3, 13')
    a('v_add_u32 v5, s31, v5')
    a('s_waitcnt lgkmcnt(0)')
    a('global_load_dword v16, v5, s[24:25]')
    a('s_cmp_lt_u32 s3, 64')
    a('s_cbranch_scc0 P1_pf2')
    a('global_load_dword v17, v5, s[26:27]')
    a.label('P1_pf2')
    a('s_sub_u32 s3, s3, 64')
    a('s_cmp_lt_u32 s3, 112')
    a('s_cbranch_scc0 P1_end')
    a('v_subrev_u32 v5, 0x80000, v5')
    a('global_load_dword v17, v5, s[28:29]')
    a.label('P1_end')
    a('s_endpgm')
    a.label('P1_zfin')
    a('s_cmp_eq_u32 s13, 7')
    a('s_cbranch_scc0 P1_ep2')
    a('s_mov_b32 s26, s54')
    a('s_xor_b32 s27, s41, ' + hex(TAGX))
    a('s_add_u32 s27, s27, 1')
    a('s_cmp_eq_u32 s26, 127')
    a('s_cbranch_scc0 P1_ep2')
    a(f'v_mov_b32 v16, {WS_EP}')
    a('v_mov_b32 v17, s27')
    a('s_mov_b64 exec, 1')
    a('global_store_dword v16, v17, s[4:5] sc1')
    a('s_mov_b64 exec, -1')
    a.label('P1_ep2')
    a('s_lshl_b32 s26, s43, 15')
    a('s_lshl_b32 s27, s30, 8')
    a('s_add_u32 s26, s26, s27')
    a(f's_add_u32 s26, s26, {WS_GR + 4096}')
    add64(a, 24, 4, 's26')
    add64(a, 44, 24, 8192); add64(a, 46, 24, 16384); add64(a, 48, 24, 24576)
    a('v_and_b32 v5, 31, v0')
    a('v_lshlrev_b32 v5, 3, v5')
    a('v_lshrrev_b32 v11, 5, v0')
    a('v_lshl_add_u32 v5, v11, 11, v5')
    G = XF
    a.label('P1_gather')
    for i in range(8):
        b = [24, 44, 46, 48][i >> 1]
        for w in range(2):
            a(f'global_load_dwordx2 {vr(G+4*i+2*w,2)}, v5, s[{b}:{b+1}] offset:{(i&1)*4096 + w*1024 - 4096} sc1')
    a('s_lshl_b32 s26, s13, 11')
    a(f's_add_u32 s26, s26, {L_TR}')
    a('v_and_b32 v8, 31, v0')
    a('v_lshlrev_b32 v8, 6, v8')
    a('v_lshl_add_u32 v8, v11, 3, v8')
    a('v_add_u32 v8, s26, v8')
    a('v_lshlrev_b32 v9, 9, v11')
    a('v_bfe_u32 v10, v0, 2, 2')
    a('v_lshl_add_u32 v9, v10, 6, v9')
    a('v_bfe_u32 v10, v0, 4, 1')
    a('v_lshl_add_u32 v9, v10, 5, v9')
    a('v_and_b32 v10, 3, v0')
    a('v_lshl_add_u32 v9, v10, 3, v9')
    a('v_add_u32 v9, s26, v9')
    a('v_mov_b32 v10, 0')
    a('s_waitcnt vmcnt(0)')
    for i in range(16):
        a(f'v_xor_b32 v16, s41, v{G+2*i+1}')
        a('v_or_b32 v10, v10, v16')
    a('v_cmp_ne_u32 vcc, 0, v10')
    a('s_cbranch_vccz P1_gok')
    a('s_sleep 2')
    a('s_branch P1_gather')
    a.label('P1_gok')
    for i in range(1, 8):
        a(f'v_add_f32 v{G}, v{G}, v{G+4*i}')
        a(f'v_add_f32 v{G+2}, v{G+2}, v{G+4*i+2}')
    a(f'v_mov_b32 v16, v{G}'); a(f'v_mov_b32 v17, v{G+2}')
    a('s_nop 1')
    a(f'v_permlane32_swap_b32 v{G}, v16')
    a(f'v_permlane32_swap_b32 v{G+2}, v17')
    a(f'v_add_f32 v16, v16, v{G}')
    a(f'v_add_f32 v17, v17, v{G+2}')
    a(f'v_mul_f32 v16, {f32(1/896)}, v16')
    a(f'v_mul_f32 v17, {f32(1/896)}, v17')
    a('v_fma_f32 v17, -v16, v16, v17')
    a('v_max_f32 v17, 0, v17')
    a(f'v_add_f32 v17, {f32(1e-5)}, v17')
    a('v_rsq_f32 v17, v17')
    a('s_sub_u32 s26, s18, 1792')
    a('s_lshr_b32 s26, s26, 6')
    a('s_add_u32 s26, s26, s14')
    a('s_lshl_b32 s26, s26, 6')
    a('s_add_u32 s26, s26, s15')
    a('s_lshl_b32 s26, s26, 11')
    a(f's_add_u32 s26, s26, {WS_Z2N}')
    add64(a, 24, 4, 's26')
    a('v_mul_f32 v16, v16, v17')
    for st in range(2):
        S = STASH + 8 * st
        if st:
            a('s_cmp_eq_u32 s34, 2')
            a('s_cbranch_scc0 P1_zend')
            add64(a, 24, 24, 2 * 128 * 1024)
        for i in range(8):
            a(f'v_lshlrev_b32 v18, 16, v{S+i}')
            a(f'v_and_b32 v19, 0xffff0000, v{S+i}')
            a('v_fma_f32 v18, v18, v17, -v16')
            a('v_fma_f32 v19, v19, v17, -v16')
            a(f'v_cvt_pk_bf16_f32 v{S+i}, v18, v19')
        for i in range(4): a(f'ds_write_b64 v8, {vr(S+2*i,2)} offset:{16*i}')
        D = T + 8 * st
        for k in range(2):
            a(f'ds_read_b64_tr_b16 {vr(D+4*k,2)}, v9 offset:{1024*k}')
            a(f'ds_read_b64_tr_b16 {vr(D+4*k+2,2)}, v9 offset:{1024*k+256}')
        a('s_waitcnt lgkmcnt(0)')
        for k in range(2): a(f'global_store_dwordx4 v1, {vr(D+4*k,4)}, s[24:25] offset:{1024*k}')
    a.label('P1_zend')
    stamp(a, 15, 1, 76)
    a('s_endpgm')
    return a, name, kernel_desc(name, 256), f'; @launch kernel={name} grid=(256,1,1) block=(512,1,1) lds=163840'
```

```python
import sys, importlib
from common import *
import asmlib
HEADER = open('parallel_sum__mha_block__mixer_gmlp__prompt.s.ref').read().split('; Override')[0]
def assemble(parts, path):
    out = HEADER
    for a, name, desc, launch in parts: out += launch + '\n'
    out += '.amdgcn_target "amdgcn-amd-amdhsa--gfx950"\n.text\n'
    nbad = 0
    for a, name, desc, launch in parts:
        bad = asmlib.check(a.lines, name)
        for b in bad: print('HAZARD', b)
        nbad += len(bad)
        out += a.text()
    out += '.section .rodata,"a"\n'
    for a, name, desc, launch in parts:
        out += '.p2align 6\n' + desc
    open(path, 'w').write(out)
    return nbad
if __name__ == '__main__':
    from p1f import gen_p1f
    from p2 import gen_p2
    from p3 import gen_p3
    parts = [gen_p1f(), gen_p2(), gen_p3()]
    assemble(parts, sys.argv[1] if len(sys.argv) > 1 else 'dev.s')
```
